```python
import torch

def _softmax(x, axis=-1):
    return torch.softmax(x, dim=axis)
def _gelu(x):
    return torch.nn.functional.gelu(x, approximate="tanh")
def _silu(x):
    return torch.nn.functional.silu(x)
def _sigmoid(x):
    return torch.sigmoid(x)
def _layernorm(x, axis=-1, eps=1e-5):
    m = x.mean(dim=axis, keepdim=True)
    v = x.var(dim=axis, keepdim=True, unbiased=False)
    return (x - m) / torch.sqrt(v + eps)
def _scatter_add(tgt, idx, src, axis=0):
    return tgt.clone().index_add_(axis, idx, src)
def _segment_sum(src, seg, n):
    out = torch.zeros((n,) + src.shape[1:], dtype=src.dtype)
    return out.index_add_(0, seg, src)
def _pad(x, pw):
    flat = tuple(v for pair in reversed(pw) for v in pair)
    return torch.nn.functional.pad(x, flat)

kernel_name = 'gated_mix__grouped_kv_mqa__mha_block__prompt'

def setup_inputs():

    _w = (lambda a: (lambda t: t.to(torch.bfloat16) if t.is_floating_point() else t)(torch.as_tensor(a)))
    def _A_setup():
        B, S, D, H = 1, 2048, 512, 32
        Dh = D // H
        return {
            "x": _w((lambda *s: torch.randn(*s, dtype=torch.bfloat16) * 0.05)(B, S, D)),
            "wq": _w((lambda *s: torch.randn(*s, dtype=torch.bfloat16) * 1.6)(D, H * Dh)),
            "wk": _w((lambda *s: torch.randn(*s, dtype=torch.bfloat16) * 1.6)(D, Dh)),
            "wv": _w((lambda *s: torch.randn(*s, dtype=torch.bfloat16) * 0.8)(D, Dh)),
            "wo": _w((lambda *s: torch.randn(*s, dtype=torch.bfloat16) * 0.8)(H * Dh, D)),
        }
    _A_in = _A_setup()

    def _B_setup():
        B, S, D, H = 1, 2048, 512, 32
        return {
            "x": _w((lambda *s: torch.randn(*s, dtype=torch.bfloat16) * 0.05)(B, S, D)),
            "wqkv": _w((lambda *s: torch.randn(*s, dtype=torch.bfloat16) * 3.2)(D, 3 * D)),
            "wo": _w((lambda *s: torch.randn(*s, dtype=torch.bfloat16) * 0.05)(D, D)),
        }
    _B_in = _B_setup()

    return {
        "A_x": _A_in["x"],
        "A_wq": _A_in["wq"],
        "A_wk": _A_in["wk"],
        "A_wv": _A_in["wv"],
        "A_wo": _A_in["wo"],
        "B_x": _B_in["x"],
        "B_wqkv": _B_in["wqkv"],
        "B_wo": _B_in["wo"],
        "gate_w": _w((lambda *s: torch.randn(*s, dtype=torch.bfloat16) * 0.1)(512) * 16.0),
    }

def reference(A_x, A_wq, A_wk, A_wv, A_wo, B_x, B_wqkv, B_wo, gate_w):
    def _A_ref(x, wq, wk, wv, wo):
        B, S, D = x.shape
        H = 32
        Dh = D // H
        q = (lambda x, *d: x.permute(*d))((x @ wq).reshape(B, S, H, Dh), 0, 2, 1, 3)
        k = x @ wk
        v = x @ wv
        scores = torch.einsum("bhqd,bkd->bhqk", q, k) * (Dh ** -0.5)
        p = _softmax(scores, axis=-1)
        o = torch.einsum("bhqk,bkd->bhqd", p, v)
        return (lambda x, *d: x.permute(*d))(o, 0, 2, 1, 3).reshape(B, S, H * Dh) @ wo

    def _B_ref(x, wqkv, wo):
        B, S, D = x.shape
        H = 32
        Dh = D // H
        qkv = (lambda x, *d: x.permute(*d))((x @ wqkv).reshape(B, S, 3, H, Dh), 2, 0, 3, 1, 4)
        q, k, v = qkv[0], qkv[1], qkv[2]
        scores = torch.einsum("bhqd,bhkd->bhqk", q, k) * (Dh ** -0.5)
        p = _softmax(scores, axis=-1)
        o = torch.einsum("bhqk,bhkd->bhqd", p, v)
        return (lambda x, *d: x.permute(*d))(o, 0, 2, 1, 3).reshape(B, S, D) @ wo

    x = A_x
    g = _sigmoid((x * gate_w).sum(-1, keepdims=True))
    a = _A_ref(x, A_wq, A_wk, A_wv, A_wo)
    b = _B_ref(x, B_wqkv, B_wo)
    return g * a + (1 - g) * b
```

```python
import sys, struct

NAME = "gated_mix__grouped_kv_mqa__mha_block__prompt"

QF_OFF = 0
KV_OFF = 4 << 20
OF_OFF = 9 << 20
G_OFF = 13 << 20
WS_SIZE = 14 << 20

C_SCALE = 0.25 * 1.4426950408889634


def f32bits(x):
    return struct.unpack("<I", struct.pack("<f", x))[0]


class Asm:
    def __init__(self):
        self.lines = []

    def __call__(self, s):
        for ln in s.strip("\n").split("\n"):
            self.lines.append("    " + ln.strip())

    def label(self, s):
        self.lines.append(s + ":")

    def raw(self, s):
        self.lines.append(s)

    def text(self):
        return "\n".join(self.lines) + "\n"


def vr(b, n=1):
    return f"v{b}" if n == 1 else f"v[{b}:{b + n - 1}]"


def sr(b, n=1):
    return f"s{b}" if n == 1 else f"s[{b}:{b + n - 1}]"


def srd(a, d, base, nbytes):
    a(f"s_mov_b32 s{d}, s{base}")
    a(f"s_and_b32 s{d + 1}, s{base + 1}, 0xffff")
    a(f"s_mov_b32 s{d + 2}, {nbytes}")
    a(f"s_mov_b32 s{d + 3}, 0x00020000")


def kernel_begin(a, name):
    a.raw(".text")
    a.raw(f".globl {name}")
    a.raw(".p2align 8")
    a.raw(f".type {name},@function")
    a.label(name)


def kernel_desc(a, name, nvgpr, nsgpr=102):
    acc = (nvgpr + 3) // 4 * 4
    a.raw('.section .rodata,"a"')
    a.raw(".p2align 6")
    a.raw(f".amdhsa_kernel {name}")
    a.raw(f"  .amdhsa_next_free_vgpr {nvgpr}")
    a.raw(f"  .amdhsa_next_free_sgpr {nsgpr}")
    a.raw(f"  .amdhsa_accum_offset {acc}")
    a.raw("  .amdhsa_group_segment_fixed_size 0")
    a.raw("  .amdhsa_kernarg_size 96")
    a.raw("  .amdhsa_user_sgpr_count 2")
    a.raw("  .amdhsa_user_sgpr_kernarg_segment_ptr 1")
    a.raw("  .amdhsa_system_sgpr_workgroup_id_x 1")
    a.raw(".end_amdhsa_kernel")


def gen_proj(a):
    K = "proj_kernel"
    kernel_begin(a, K)
    S_X, S_WQ, S_WK, S_WV, S_WQKV, S_WS = 4, 6, 8, 10, 12, 14
    R_X, R_W, R_WS, R_WV = 16, 20, 24, 28
    S_TB, S_CB, S_WAVE = 32, 33, 34
    S_XROW = 35
    S_WROW = 36
    S_PITCH = 37
    S_T0, S_T1, S_T2, S_T3 = 38, 39, 40, 41
    S_M0X, S_M0W = 42, 43
    S_P4 = 44
    S_P64 = 45
    S_DBASE, S_HSTR, S_TSTR = 46, 47, 48
    V_LANE = 1
    V_XE, V_XO, V_WOFF = 2, 3, 4
    V_XA = 5
    V_WA = 9
    V_T = 10
    V_XF = 16
    V_WF = 48
    V_ACC = 56
    V_TMP = 120
    NV = 128

    a(f"s_cmp_ge_u32 s2, 272")
    a(f"s_cbranch_scc1 L_proj_end")
    a(f"s_load_dwordx8 s[4:11], s[0:1], 0")
    a(f"s_load_dwordx2 s[12:13], s[0:1], 48")
    a(f"s_load_dwordx2 s[14:15], s[0:1], 88")
    a(f"v_and_b32 v{V_LANE}, 63, v0")
    a(f"v_lshrrev_b32 v{V_T}, 6, v0")
    a(f"s_and_b32 s{S_TB}, s2, 15")
    a(f"s_lshr_b32 s{S_CB}, s2, 4")
    a(f"v_readfirstlane_b32 s{S_WAVE}, v{V_T}")
    a(f"v_lshrrev_b32 v{V_T}, 3, v{V_LANE}")
    a(f"v_lshlrev_b32 v{V_T}, 10, v{V_T}")
    a(f"v_and_b32 v{V_T + 1}, 7, v{V_LANE}")
    a(f"v_lshrrev_b32 v{V_T + 2}, 4, v{V_LANE}")
    a(f"v_xor_b32 v{V_T + 1}, v{V_T + 1}, v{V_T + 2}")
    a(f"v_lshlrev_b32 v{V_T + 1}, 4, v{V_T + 1}")
    a(f"v_add_u32 v{V_XE}, v{V_T}, v{V_T + 1}")
    a(f"v_xor_b32 v{V_XO}, 64, v{V_XE}")
    a(f"v_and_b32 v{V_T}, 31, v{V_LANE}")
    a(f"v_lshrrev_b32 v{V_T + 1}, 1, v{V_T}")
    a(f"v_and_b32 v{V_T + 1}, 7, v{V_T + 1}")
    a(f"v_lshrrev_b32 v{V_T + 2}, 5, v{V_LANE}")
    a(f"v_xor_b32 v{V_T + 1}, v{V_T + 1}, v{V_T + 2}")
    a(f"v_lshlrev_b32 v{V_T + 1}, 4, v{V_T + 1}")
    a(f"v_lshlrev_b32 v{V_T}, 7, v{V_T}")
    a(f"v_add_u32 v{V_XA}, v{V_T}, v{V_T + 1}")
    for s in range(1, 4):
        a(f"v_xor_b32 v{V_XA + s}, {32 * s}, v{V_XA}")
    a(f"s_waitcnt lgkmcnt(0)")
    srd(a, R_X, S_X, 2048 * 1024)
    srd(a, R_WS, S_WS, WS_SIZE)
    a(f"s_lshl_b32 s{S_T0}, s{S_TB}, 7")
    a(f"s_lshl_b32 s{S_T1}, s{S_WAVE}, 5")
    a(f"s_add_u32 s{S_T0}, s{S_T0}, s{S_T1}")
    a(f"s_lshl_b32 s{S_XROW}, s{S_T0}, 10")
    a(f"s_lshl_b32 s{S_M0X}, s{S_WAVE}, 12")
    a(f"s_add_u32 s{S_M0W}, s{S_M0X}, 16384")
    for i in range(64):
        a(f"v_mov_b32 v{V_ACC + i}, 0")
    a(f"s_cmp_eq_u32 s{S_CB}, 16")
    a(f"s_cbranch_scc1 L_proj_special")

    a(f"s_cmp_lt_u32 s{S_CB}, 4")
    a(f"s_cselect_b32 s{R_W}, s{S_WQ}, s{S_WQKV}")
    a(f"s_cselect_b32 s{S_T1}, s{S_WQ + 1}, s{S_WQKV + 1}")
    a(f"s_cselect_b32 s{S_PITCH}, 1, 3")
    a(f"s_cselect_b32 s{S_T0}, 0, 4")
    a(f"s_and_b32 s{R_W + 1}, s{S_T1}, 0xffff")
    a(f"s_lshl_b32 s{R_W + 2}, s{S_PITCH}, 19")
    a(f"s_mov_b32 s{R_W + 3}, 0x00020000")
    a(f"s_lshl_b32 s{S_PITCH}, s{S_PITCH}, 10")
    a(f"s_sub_u32 s{S_T0}, s{S_CB}, s{S_T0}")
    a(f"s_lshl_b32 s{S_T0}, s{S_T0}, 8")
    a(f"s_lshl_b32 s{S_P4}, s{S_PITCH}, 2")
    a(f"s_lshl_b32 s{S_P64}, s{S_PITCH}, 6")
    a(f"s_lshl_b32 s{S_T1}, s{S_WAVE}, 4")
    a(f"s_mul_i32 s{S_T1}, s{S_T1}, s{S_PITCH}")
    a(f"s_add_u32 s{S_WROW}, s{S_T0}, s{S_T1}")
    a(f"v_lshrrev_b32 v{V_T}, 4, v{V_LANE}")
    a(f"v_mul_lo_u32 v{V_T + 1}, v{V_T}, s{S_PITCH}")
    a(f"v_lshlrev_b32 v{V_T}, 2, v{V_T}")
    a(f"v_and_b32 v{V_T + 2}, 15, v{V_LANE}")
    a(f"v_xor_b32 v{V_T}, v{V_T}, v{V_T + 2}")
    a(f"v_lshlrev_b32 v{V_T}, 4, v{V_T}")
    a(f"v_add_u32 v{V_WOFF}, v{V_T}, v{V_T + 1}")
    a(f"v_lshrrev_b32 v{V_T}, 5, v{V_LANE}")
    a(f"v_lshrrev_b32 v{V_T + 1}, 2, v{V_LANE}")
    a(f"v_and_b32 v{V_T + 1}, 3, v{V_T + 1}")
    a(f"v_lshl_add_u32 v{V_T}, v{V_T}, 3, v{V_T + 1}")
    a(f"v_lshlrev_b32 v{V_T}, 8, v{V_T}")
    a(f"v_xor_b32 v{V_T + 1}, s{S_WAVE}, v{V_T + 1}")
    a(f"v_lshlrev_b32 v{V_T + 1}, 6, v{V_T + 1}")
    a(f"v_add_u32 v{V_T}, v{V_T}, v{V_T + 1}")
    a(f"v_lshrrev_b32 v{V_T + 1}, 4, v{V_LANE}")
    a(f"v_and_b32 v{V_T + 1}, 1, v{V_T + 1}")
    a(f"v_lshlrev_b32 v{V_T + 1}, 5, v{V_T + 1}")
    a(f"v_add_u32 v{V_T}, v{V_T}, v{V_T + 1}")
    a(f"v_and_b32 v{V_T + 1}, 3, v{V_LANE}")
    a(f"v_lshlrev_b32 v{V_T + 1}, 3, v{V_T + 1}")
    a(f"v_add_u32 v{V_WA}, v{V_T}, v{V_T + 1}")

    def dma_x(kc, stage):
        for q in range(4):
            a(f"s_add_u32 s{S_T0}, s{S_XROW}, {q * 8192 + kc * 128}")
            a(f"s_add_u32 m0, s{S_M0X}, {stage * 32768 + q * 1024}")
            a(f"s_nop 0")
            a(f"buffer_load_dwordx4 v{V_XE if q % 2 == 0 else V_XO}, s[{R_X}:{R_X + 3}], s{S_T0} offen lds")

    def dma_w(kc, stage):
        a(f"s_mul_i32 s{S_T1}, s{S_P64}, {kc}")
        a(f"s_add_u32 s{S_T1}, s{S_T1}, s{S_WROW}")
        for q in range(4):
            a(f"s_add_u32 m0, s{S_M0W}, {stage * 32768 + q * 1024}")
            a(f"s_nop 0")
            a(f"buffer_load_dwordx4 v{V_WOFF}, s[{R_W}:{R_W + 3}], s{S_T1} offen lds")
            if q < 3:
                a(f"s_add_u32 s{S_T1}, s{S_T1}, s{S_P4}")

    def reads(s, buf, stage, wofs):
        a(f"ds_read_b64_tr_b16 {vr(V_WF + 4 * buf, 2)}, v{V_WA} offset:{wofs(s, 0)}")
        a(f"ds_read_b64_tr_b16 {vr(V_WF + 4 * buf + 2, 2)}, v{V_WA} offset:{wofs(s, 1)}")
        for tt in range(4):
            a(f"ds_read_b128 {vr(V_XF + 16 * buf + 4 * tt, 4)}, v{V_XA + s} offset:{stage * 32768 + tt * 4096}")

    def mfmas(buf, typ):
        for tt in range(4):
            xf = vr(V_XF + 16 * buf + 4 * tt, 4)
            wf = vr(V_WF + 4 * buf, 4)
            acc = vr(V_ACC + 16 * tt, 16)
            if typ == "T":
                a(f"v_mfma_f32_32x32x16_bf16 {acc}, {wf}, {xf}, {acc}")
            else:
                a(f"v_mfma_f32_32x32x16_bf16 {acc}, {xf}, {wf}, {acc}")

    def kloop(typ, special, compute=True):
        ndma = 4 if special else 8
        dma_x(0, 0)
        if not special:
            dma_w(0, 0)
        for kc in range(8):
            st = kc & 1
            if kc < 7:
                dma_x(kc + 1, st ^ 1)
                if not special:
                    dma_w(kc + 1, st ^ 1)
                a(f"s_waitcnt vmcnt({ndma})")
            else:
                a(f"s_waitcnt vmcnt(0)")
            a("s_barrier")
            if compute:
                if special:
                    def wofs(s, half, kc=kc):
                        k = kc * 64 + 16 * s + 4 * half
                        return (16384 if k < 256 else 49152) + (k & 255) * 64
                else:
                    def wofs(s, half, st=st):
                        return st * 32768 + 16384 + (16 * s + 4 * half) * 256
                reads(0, 0, st, wofs)
                for s in range(4):
                    if s < 3:
                        reads(s + 1, (s + 1) & 1, st, wofs)
                        a("s_waitcnt lgkmcnt(6)")
                    else:
                        a("s_waitcnt lgkmcnt(0)")
                    mfmas(s & 1, typ)
            if kc < 7:
                a("s_barrier")

    def pack_store(tt, half, voff, soff, imm=0):
        b = V_ACC + 16 * tt + 8 * half
        d = V_XF + 4 * ((2 * tt + half) % 8)
        for i in range(4):
            a(f"v_cvt_pk_bf16_f32 v{d + i}, v{b + 2 * i}, v{b + 2 * i + 1}")
        a(f"buffer_store_dwordx4 {vr(d, 4)}, v{voff}, s[{R_WS}:{R_WS + 3}], s{soff} offen offset:{imm}")

    a(f"s_cmp_ge_u32 s{S_CB}, 12")
    a(f"s_cbranch_scc1 L_proj_N")
    kloop("T", False)
    a("s_nop 15")
    a(f"s_lshl_b32 s{S_T0}, s{S_CB}, 2")
    a(f"s_add_u32 s{S_T0}, s{S_T0}, s{S_WAVE}")
    a(f"s_cmp_lt_u32 s{S_T0}, 32")
    a(f"s_cselect_b32 s{S_HSTR}, 1, 2")
    a(f"s_cselect_b32 s{S_T1}, {QF_OFF}, {(KV_OFF + 131072 - 64 * 131072) & 0xffffffff}")
    a(f"s_lshl_b32 s{S_TSTR}, s{S_HSTR}, 10")
    a(f"s_lshl_b32 s{S_HSTR}, s{S_HSTR}, 16")
    a(f"s_lshl_b32 s{S_T0}, s{S_T0}, 1")
    a(f"s_mul_i32 s{S_T0}, s{S_T0}, s{S_HSTR}")
    a(f"s_add_u32 s{S_DBASE}, s{S_T0}, s{S_T1}")
    a(f"s_lshl_b32 s{S_T0}, s{S_TB}, 2")
    a(f"s_mul_i32 s{S_T0}, s{S_T0}, s{S_TSTR}")
    a(f"s_add_u32 s{S_DBASE}, s{S_DBASE}, s{S_T0}")
    a(f"v_lshlrev_b32 v{V_T}, 4, v{V_LANE}")
    for tt in range(4):
        a(f"s_add_u32 s{S_T0}, s{S_DBASE}, s{S_HSTR}")
        pack_store(tt, 0, V_T, S_DBASE)
        pack_store(tt, 1, V_T, S_T0)
        if tt < 3:
            a(f"s_add_u32 s{S_DBASE}, s{S_DBASE}, s{S_TSTR}")
    a("s_endpgm")

    a.label("L_proj_N")
    kloop("N", False)
    a("s_nop 15")
    a(f"s_sub_u32 s{S_T0}, s{S_CB}, 12")
    a(f"s_lshl_b32 s{S_T0}, s{S_T0}, 2")
    a(f"s_add_u32 s{S_T0}, s{S_T0}, s{S_WAVE}")
    a(f"s_lshl_b32 s{S_T0}, s{S_T0}, 18")
    a(f"s_add_u32 s{S_DBASE}, s{S_T0}, {KV_OFF + 131072 + 1024}")
    a(f"s_lshl_b32 s{S_T0}, s{S_TB}, 13")
    a(f"s_add_u32 s{S_DBASE}, s{S_DBASE}, s{S_T0}")
    a(f"v_lshrrev_b32 v{V_T}, 4, v{V_LANE}")
    a(f"v_and_b32 v{V_T}, 1, v{V_T}")
    a(f"v_lshlrev_b32 v{V_T}, 17, v{V_T}")
    a(f"v_lshrrev_b32 v{V_T + 1}, 5, v{V_LANE}")
    a(f"v_lshlrev_b32 v{V_T + 1}, 9, v{V_T + 1}")
    a(f"v_add_u32 v{V_T}, v{V_T}, v{V_T + 1}")
    a(f"v_and_b32 v{V_T + 1}, 15, v{V_LANE}")
    a(f"v_lshlrev_b32 v{V_T + 1}, 4, v{V_T + 1}")
    a(f"v_add_u32 v{V_T}, v{V_T}, v{V_T + 1}")
    for tt in range(4):
        pack_store(tt, 0, V_T, S_DBASE, 0)
        pack_store(tt, 1, V_T, S_DBASE, 256)
        if tt < 3:
            a(f"s_add_u32 s{S_DBASE}, s{S_DBASE}, 2048")
    a("s_endpgm")

    a.label("L_proj_special")
    srd(a, R_W, S_WK, 16384)
    srd(a, R_WV, S_WV, 16384)
    a(f"v_lshrrev_b32 v{V_T}, 2, v0")
    a(f"v_lshlrev_b32 v{V_T}, 5, v{V_T}")
    a(f"v_and_b32 v{V_T + 1}, 3, v0")
    a(f"v_and_b32 v{V_T + 2}, 1, v0")
    a(f"v_lshlrev_b32 v{V_T + 2}, 4, v{V_T + 2}")
    a(f"v_add_u32 v{V_T}, v{V_T}, v{V_T + 2}")
    a(f"v_mov_b32 v{V_T + 2}, 0x40000000")
    a(f"v_cmp_gt_u32 vcc, 2, v{V_T + 1}")
    a(f"s_nop 1")
    a(f"v_cndmask_b32 v{V_T + 3}, v{V_T + 2}, v{V_T}, vcc")
    a(f"v_cndmask_b32 v{V_T + 4}, v{V_T}, v{V_T + 2}, vcc")
    a(f"v_lshlrev_b32 v{V_T + 5}, 4, v0")
    for i in range(8):
        a(f"s_mov_b32 s{S_T0}, {i * 2048}")
        a(f"buffer_load_dwordx4 {vr(V_XF, 4)}, v{V_T + 3}, s[{R_W}:{R_W + 3}], s{S_T0} offen")
        a(f"buffer_load_dwordx4 {vr(V_XF + 4, 4)}, v{V_T + 4}, s[{R_WV}:{R_WV + 3}], s{S_T0} offen")
        a(f"s_waitcnt vmcnt(0)")
        for j in range(4):
            a(f"v_or_b32 v{V_XF + j}, v{V_XF + j}, v{V_XF + 4 + j}")
        base = (16384 if i < 4 else 49152) + (i & 3) * 4096
        a(f"ds_write_b128 v{V_T + 5}, {vr(V_XF, 4)} offset:{base}")
        a(f"s_waitcnt lgkmcnt(0)")
    a(f"v_lshrrev_b32 v{V_T}, 5, v{V_LANE}")
    a(f"v_lshrrev_b32 v{V_T + 1}, 2, v{V_LANE}")
    a(f"v_and_b32 v{V_T + 1}, 3, v{V_T + 1}")
    a(f"v_lshl_add_u32 v{V_T}, v{V_T}, 3, v{V_T + 1}")
    a(f"v_lshlrev_b32 v{V_T}, 6, v{V_T}")
    a(f"v_lshrrev_b32 v{V_T + 1}, 4, v{V_LANE}")
    a(f"v_and_b32 v{V_T + 1}, 1, v{V_T + 1}")
    a(f"v_lshlrev_b32 v{V_T + 1}, 5, v{V_T + 1}")
    a(f"v_add_u32 v{V_T}, v{V_T}, v{V_T + 1}")
    a(f"v_and_b32 v{V_T + 1}, 3, v{V_LANE}")
    a(f"v_lshlrev_b32 v{V_T + 1}, 3, v{V_T + 1}")
    a(f"v_add_u32 v{V_WA}, v{V_T}, v{V_T + 1}")
    a(f"s_cmp_eq_u32 s{S_WAVE}, 0")
    a(f"s_cbranch_scc1 L_proj_spT")
    a(f"s_cmp_eq_u32 s{S_WAVE}, 1")
    a(f"s_cbranch_scc1 L_proj_spN")
    kloop("T", True, compute=False)
    a("s_endpgm")
    a.label("L_proj_spT")
    kloop("T", True)
    a("s_nop 15")
    a(f"s_lshl_b32 s{S_T0}, s{S_TB}, 13")
    a(f"s_add_u32 s{S_DBASE}, s{S_T0}, {KV_OFF}")
    a(f"v_lshlrev_b32 v{V_T}, 4, v{V_LANE}")
    for tt in range(4):
        pack_store(tt, 0, V_T, S_DBASE)
        if tt < 3:
            a(f"s_add_u32 s{S_DBASE}, s{S_DBASE}, 2048")
    a("s_endpgm")
    a.label("L_proj_spN")
    kloop("N", True)
    a("s_nop 15")
    a(f"s_lshl_b32 s{S_T0}, s{S_TB}, 13")
    a(f"s_add_u32 s{S_DBASE}, s{S_T0}, {KV_OFF + 1024}")
    a(f"v_lshrrev_b32 v{V_T + 1}, 5, v{V_LANE}")
    a(f"v_lshlrev_b32 v{V_T + 1}, 9, v{V_T + 1}")
    a(f"v_and_b32 v{V_T}, 15, v{V_LANE}")
    a(f"v_lshlrev_b32 v{V_T}, 4, v{V_T}")
    a(f"v_add_u32 v{V_T}, v{V_T}, v{V_T + 1}")
    a(f"v_and_b32 v{V_T + 1}, 16, v{V_LANE}")
    a(f"v_mov_b32 v{V_T + 2}, 0x40000000")
    a(f"v_cmp_ne_u32 vcc, 0, v{V_T + 1}")
    a(f"s_nop 1")
    a(f"v_cndmask_b32 v{V_T}, v{V_T + 2}, v{V_T}, vcc")
    for tt in range(4):
        pack_store(tt, 0, V_T, S_DBASE, 0)
        pack_store(tt, 1, V_T, S_DBASE, 256)
        if tt < 3:
            a(f"s_add_u32 s{S_DBASE}, s{S_DBASE}, 2048")
    a.label("L_proj_end")
    a("s_endpgm")
    return K, NV


def gen_attn(a, round_scores=False, bias=0.0):
    K = "attn_kernel"
    kernel_begin(a, K)
    S_X, S_GW, S_WS = 4, 6, 8
    R_WS, R_X, R_GW = 12, 16, 20
    S_WAVE, S_HEAD, S_QT, S_KV = 24, 25, 26, 27
    S_T0, S_T1, S_T2 = 28, 29, 30
    S_MASK = 32
    S_IT = 34
    S_G, S_OMG = 35, 36
    S_SLOW = 37
    V_LANE = 1
    V_L16 = 2
    V_A = 3
    V_T = 4
    V_QH, V_QL = 12, 16
    V_K = 20
    V_V = 28
    V_P = 36
    V_M = 44
    V_C = 45
    V_NM = 48
    V_S = 64
    V_O = 96
    NV = 112

    a(f"s_cmp_ge_u32 s2, 256")
    a(f"s_cbranch_scc1 L_attn_end")
    a(f"s_load_dwordx2 s[{S_X}:{S_X + 1}], s[0:1], 0")
    a(f"s_load_dwordx2 s[{S_GW}:{S_GW + 1}], s[0:1], 64")
    a(f"s_load_dwordx2 s[{S_WS}:{S_WS + 1}], s[0:1], 88")
    a(f"v_and_b32 v{V_LANE}, 63, v0")
    a(f"v_lshrrev_b32 v{V_T}, 6, v0")
    a(f"v_lshlrev_b32 v{V_L16}, 4, v{V_LANE}")
    a(f"v_readfirstlane_b32 s{S_WAVE}, v{V_T}")
    a(f"s_and_b32 s{S_T0}, s2, 7")
    a(f"s_lshr_b32 s{S_T1}, s2, 3")
    a(f"s_and_b32 s{S_T2}, s{S_T1}, 3")
    a(f"s_lshr_b32 s{S_T1}, s{S_T1}, 2")
    a(f"s_lshl_b32 s{S_T1}, s{S_T1}, 3")
    a(f"s_add_u32 s{S_HEAD}, s{S_T1}, s{S_T0}")
    a(f"s_lshl_b32 s{S_QT}, s{S_T2}, 4")
    a(f"s_add_u32 s{S_QT}, s{S_QT}, s{S_WAVE}")
    a(f"s_sub_u32 s{S_T0}, s{S_HEAD}, 31")
    a(f"s_cmp_lt_u32 s{S_HEAD}, 32")
    a(f"s_cselect_b32 s{S_KV}, 0, s{S_T0}")
    a(f"s_lshl_b32 s{S_KV}, s{S_KV}, 17")
    a(f"s_add_u32 s{S_KV}, s{S_KV}, {KV_OFF}")
    a(f"s_mov_b32 s{S_MASK}, 0x0000ffff")
    a(f"s_mov_b32 s{S_MASK + 1}, 0x0000ffff")
    a(f"s_waitcnt lgkmcnt(0)")
    srd(a, R_WS, S_WS, WS_SIZE)
    srd(a, R_X, S_X, 2048 * 1024)
    srd(a, R_GW, S_GW, 1024)
    a(f"s_lshl_b32 s{S_T0}, s{S_HEAD}, 16")
    a(f"s_lshl_b32 s{S_T1}, s{S_QT}, 10")
    a(f"s_add_u32 s{S_T0}, s{S_T0}, s{S_T1}")
    a(f"buffer_load_dwordx4 {vr(V_S, 4)}, v{V_L16}, s[{R_WS}:{R_WS + 3}], s{S_T0} offen")
    a(f"s_and_b32 s{S_T0}, s{S_WAVE}, 7")
    a(f"s_lshl_b32 s{S_T1}, s2, 3")
    a(f"s_add_u32 s{S_T0}, s{S_T0}, s{S_T1}")
    a(f"s_lshl_b32 s{S_T0}, s{S_T0}, 10")
    a(f"buffer_load_dwordx4 {vr(V_S + 4, 4)}, v{V_L16}, s[{R_X}:{R_X + 3}], s{S_T0} offen")
    a(f"buffer_load_dwordx4 {vr(V_S + 8, 4)}, v{V_L16}, s[{R_GW}:{R_GW + 3}], 0 offen")
    a(f"s_lshl_b32 s{S_T0}, s{S_WAVE}, 10")
    a(f"s_add_u32 s{S_T1}, s{S_T0}, s{S_KV}")
    for i in range(8):
        a(f"s_add_u32 m0, s{S_T0}, {i * 16384}")
        a(f"s_add_u32 s{S_T2}, s{S_T1}, {i * 16384}")
        a(f"buffer_load_dwordx4 v{V_L16}, s[{R_WS}:{R_WS + 3}], s{S_T2} offen lds")
    for i in range(8):
        a(f"v_mov_b32 v{V_V + i}, 0x3f803f80")
    for i in range(16):
        a(f"v_mov_b32 v{V_O + i}, 0")
    a(f"v_mov_b32 v{V_C}, {f32bits(C_SCALE):#x}")
    a(f"v_mov_b32 v{V_A}, v{V_L16}")
    a(f"s_waitcnt vmcnt(8)")
    for i in range(4):
        q = V_S + i
        if round_scores:
            a(f"v_mov_b32 v{V_QH + i}, v{q}")
            continue
        a(f"v_lshlrev_b32 v{V_T}, 16, v{q}")
        a(f"v_and_b32 v{V_T + 1}, 0xffff0000, v{q}")
        a(f"v_mul_f32 v{V_T}, v{V_C}, v{V_T}")
        a(f"v_mul_f32 v{V_T + 1}, v{V_C}, v{V_T + 1}")
        a(f"v_cvt_pk_bf16_f32 v{V_QH + i}, v{V_T}, v{V_T + 1}")
        a(f"v_lshlrev_b32 v{V_T + 2}, 16, v{V_QH + i}")
        a(f"v_and_b32 v{V_T + 3}, 0xffff0000, v{V_QH + i}")
        a(f"v_sub_f32 v{V_T}, v{V_T}, v{V_T + 2}")
        a(f"v_sub_f32 v{V_T + 1}, v{V_T + 1}, v{V_T + 3}")
        a(f"v_cvt_pk_bf16_f32 v{V_QL + i}, v{V_T}, v{V_T + 1}")
    a(f"v_mov_b32 v{V_T + 4}, 0")
    for i in range(4):
        x, g = V_S + 4 + i, V_S + 8 + i
        a(f"v_lshlrev_b32 v{V_T}, 16, v{x}")
        a(f"v_and_b32 v{V_T + 1}, 0xffff0000, v{x}")
        a(f"v_lshlrev_b32 v{V_T + 2}, 16, v{g}")
        a(f"v_and_b32 v{V_T + 3}, 0xffff0000, v{g}")
        a(f"v_mul_f32 v{V_T}, v{V_T}, v{V_T + 2}")
        a(f"v_mul_f32 v{V_T + 1}, v{V_T + 1}, v{V_T + 3}")
        a(f"v_cvt_pk_bf16_f32 v{V_T}, v{V_T}, v{V_T + 1}")
        a(f"v_lshlrev_b32 v{V_T + 1}, 16, v{V_T}")
        a(f"v_and_b32 v{V_T}, 0xffff0000, v{V_T}")
        a(f"v_add_f32 v{V_T + 4}, v{V_T + 4}, v{V_T + 1}")
        a(f"v_add_f32 v{V_T + 4}, v{V_T + 4}, v{V_T}")
    for sw in (0x041F, 0x081F, 0x101F, 0x201F, 0x401F):
        a(f"ds_swizzle_b32 v{V_T}, v{V_T + 4} offset:{sw:#x}")
        a(f"s_waitcnt lgkmcnt(0)")
        a(f"v_add_f32 v{V_T + 4}, v{V_T + 4}, v{V_T}")
    a(f"v_mov_b32 v{V_T}, v{V_T + 4}")
    a(f"s_nop 1")
    a(f"v_permlane32_swap_b32 v{V_T}, v{V_T + 4}")
    a(f"s_nop 1")
    a(f"v_add_f32 v{V_T}, v{V_T}, v{V_T + 4}")
    a(f"v_cvt_pk_bf16_f32 v{V_T}, 0, v{V_T}")
    a(f"v_mul_f32 v{V_T}, {f32bits(-1.4426950408889634):#x}, v{V_T}")
    a(f"v_exp_f32 v{V_T}, v{V_T}")
    a(f"s_nop 0")
    a(f"v_add_f32 v{V_T}, 1.0, v{V_T}")
    a(f"v_rcp_f32 v{V_T}, v{V_T}")
    a(f"s_nop 0")
    a(f"v_cvt_pk_bf16_f32 v{V_T}, 0, v{V_T}")
    a(f"v_sub_f32 v{V_T + 1}, 1.0, v{V_T}")
    a(f"v_cvt_pk_bf16_f32 v{V_T + 1}, 0, v{V_T + 1}")
    a(f"s_nop 0")
    a(f"v_readfirstlane_b32 s{S_G}, v{V_T}")
    a(f"v_readfirstlane_b32 s{S_OMG}, v{V_T + 1}")

    def mf(d, A, B, c):
        a(f"v_mfma_f32_32x32x16_bf16 {vr(d, 16)}, {vr(A, 4)}, {vr(B, 4)}, {c}")

    def vread(dst, off):
        a(f"s_mov_b64 exec, s[{S_MASK}:{S_MASK + 1}]")
        a(f"ds_read_b128 {vr(dst, 4)}, v{V_A} offset:{off}")
        a(f"s_mov_b64 exec, -1")

    def tile_max(S, dst, tmp):
        a(f"v_max3_f32 v{dst}, v{S}, v{S + 1}, v{S + 2}")
        for i in range(3, 15, 2):
            a(f"v_max3_f32 v{dst}, v{dst}, v{S + i}, v{S + i + 1}")
        a(f"v_max_f32 v{dst}, v{dst}, v{S + 15}")
        a(f"v_mov_b32 v{tmp}, v{dst}")
        a(f"s_nop 1")
        a(f"v_permlane32_swap_b32 v{dst}, v{tmp}")
        a(f"s_nop 1")
        a(f"v_max_f32 v{dst}, v{dst}, v{tmp}")

    a(f"s_waitcnt vmcnt(7)")
    a(f"s_barrier")
    a(f"ds_read_b128 {vr(V_K, 4)}, v{V_A} offset:0")
    a(f"ds_read_b128 {vr(V_K + 4, 4)}, v{V_A} offset:2048")
    vread(V_V, 1024)
    a(f"s_waitcnt lgkmcnt(2)")
    S0 = V_S
    if round_scores:
        mf(S0, V_K, V_QH, "0")
    else:
        mf(S0, V_K, V_QH, "0")
        mf(S0, V_K, V_QL, vr(S0, 16))
    a("s_nop 15")
    if round_scores:
        for i in range(16):
            a(f"v_cvt_pk_bf16_f32 v{S0 + i}, 0, v{S0 + i}")
        tile_max(S0, V_T, V_T + 1)
        a(f"v_mul_f32 v{V_T}, v{V_C}, v{V_T}")
        a(f"v_sub_f32 v{V_NM}, {f32bits(-bias):#x}, v{V_T}") if bias else a(f"v_sub_f32 v{V_NM}, 0, v{V_T}")
    else:
        tile_max(S0, V_T, V_T + 1)
        if bias:
            a(f"v_sub_f32 v{V_NM}, {f32bits(-bias):#x}, v{V_T}")
        else:
            a(f"v_sub_f32 v{V_NM}, 0, v{V_T}")
        for i in range(1, 16):
            a(f"v_mov_b32 v{V_NM + i}, v{V_NM}")
        for i in range(16):
            a(f"v_add_f32 v{S0 + i}, v{S0 + i}, v{V_NM}")
    for i in range(4, 8):
        a(f"v_mov_b32 v{V_P + i}, 0")
    a(f"s_mov_b32 s{S_IT}, 0")
    a("s_nop 1")

    def ex(A, i):
        if round_scores:
            a(f"v_cvt_pk_bf16_f32 v{A + i}, 0, v{A + i}")
            a(f"v_fma_f32 v{A + i}, v{A + i}, v{V_C}, v{V_NM}")
        a(f"v_exp_f32 v{A + i}, v{A + i}")

    def cv(A, i):
        a(f"v_cvt_pk_bf16_f32 v{V_P + i}, v{A + 2 * i}, v{A + 2 * i + 1}")

    def sub_iter(par):
        A = V_S + 16 * par
        B = V_S + 16 * (par ^ 1)
        Kn = V_K + 4 * (par ^ 1)
        Kp = V_K + 4 * par
        base = 2048 * par
        a(f"s_waitcnt lgkmcnt(1)")
        if round_scores:
            mf(B, Kn, V_QH, "0")
        else:
            mf(B, Kn, V_QH, vr(V_NM, 16))
        for i in range(0, 4):
            ex(A, i)
        mf(V_O, V_V + 4, V_P + 4, vr(V_O, 16))
        vread(V_V + 4, base + 1024 + 256)
        for i in range(4, 8):
            ex(A, i)
        for i in range(0, 4):
            cv(A, i)
        if not round_scores:
            mf(B, Kn, V_QL, vr(B, 16))
        a(f"ds_read_b128 {vr(Kp, 4)}, v{V_A} offset:{base + 4096}")
        for i in range(8, 12):
            ex(A, i)
        a(f"s_waitcnt lgkmcnt(2)")
        mf(V_O, V_V, V_P, vr(V_O, 16))
        vread(V_V, base + 2048 + 1024)
        for i in range(12, 16):
            ex(A, i)
        for i in range(4, 8):
            cv(A, i)

    a.label("L_attn_loop")
    a(f"s_cmp_eq_u32 s{S_IT}, 2")
    a(f"s_cbranch_scc0 L_attn_nobar")
    a(f"s_waitcnt vmcnt(0)")
    a(f"s_barrier")
    a.label("L_attn_nobar")
    sub_iter(0)
    sub_iter(1)
    a(f"v_add_u32 v{V_A}, 0x1000, v{V_A}")
    a(f"s_add_u32 s{S_IT}, s{S_IT}, 1")
    a(f"s_cmp_lt_u32 s{S_IT}, 32")
    a(f"s_cbranch_scc1 L_attn_loop")
    a(f"s_waitcnt lgkmcnt(0)")
    mf(V_O, V_V + 4, V_P + 4, vr(V_O, 16))
    a("s_nop 15")
    a("s_nop 3")
    a(f"v_mov_b32 v{V_T}, {f32bits(2.0 ** 120):#x}")
    a(f"v_cmp_nlt_f32 vcc, v{V_O + 8}, v{V_T}")
    a(f"s_mov_b64 s[{S_T0}:{S_T0 + 1}], vcc")
    for i in range(8):
        a(f"v_cmp_nlt_f32 vcc, abs(v{V_O + i}), v{V_T}")
        a(f"s_or_b64 s[{S_T0}:{S_T0 + 1}], s[{S_T0}:{S_T0 + 1}], vcc")
    a(f"s_cmp_eq_u64 s[{S_T0}:{S_T0 + 1}], 0")
    a(f"s_cbranch_scc0 L_attn_slow")
    a.label("L_attn_epi")
    a(f"v_rcp_f32 v{V_T}, v{V_O + 8}")
    a("s_nop 0")
    for i in range(8):
        a(f"v_mul_f32 v{V_O + i}, v{V_O + i}, v{V_T}")
    for i in range(4):
        a(f"v_cvt_pk_bf16_f32 v{V_P + i}, v{V_O + 2 * i}, v{V_O + 2 * i + 1}")
    a(f"s_lshl_b32 s{S_T0}, s{S_HEAD}, 16")
    a(f"s_lshl_b32 s{S_T1}, s{S_QT}, 10")
    a(f"s_add_u32 s{S_T0}, s{S_T0}, s{S_T1}")
    a(f"s_add_u32 s{S_T0}, s{S_T0}, {OF_OFF}")
    a(f"buffer_store_dwordx4 {vr(V_P, 4)}, v{V_L16}, s[{R_WS}:{R_WS + 3}], s{S_T0} offen")
    a(f"s_cmp_ge_u32 s{S_WAVE}, 8")
    a(f"s_cbranch_scc1 L_attn_end")
    a(f"s_lshl_b32 s{S_T1}, s2, 3")
    a(f"s_add_u32 s{S_T0}, s{S_WAVE}, s{S_T1}")
    a(f"s_lshl_b32 s{S_T0}, s{S_T0}, 2")
    a(f"s_add_u32 s{S_T0}, s{S_T0}, {G_OFF}")
    a(f"v_mov_b32 v{V_T}, s{S_G}")
    a(f"v_mov_b32 v{V_T + 1}, s{S_OMG}")
    a(f"v_mov_b32 v{V_T + 2}, 0")
    a(f"s_mov_b64 exec, 1")
    a(f"buffer_store_dword v{V_T}, v{V_T + 2}, s[{R_WS}:{R_WS + 3}], s{S_T0} offen")
    a(f"buffer_store_dword v{V_T + 1}, v{V_T + 2}, s[{R_WS}:{R_WS + 3}], s{S_T0} offen offset:8192-8192+0")
    a.lines.pop()
    a(f"s_add_u32 s{S_T0}, s{S_T0}, 8192")
    a(f"buffer_store_dword v{V_T + 1}, v{V_T + 2}, s[{R_WS}:{R_WS + 3}], s{S_T0} offen")
    a.label("L_attn_end")
    a("s_endpgm")

    a.label("L_attn_slow")
    a(f"v_mov_b32 v{V_A}, v{V_L16}")
    for i in range(16):
        a(f"v_mov_b32 v{V_O + i}, 0")
    a(f"v_mov_b32 v{V_M}, 0xff7fffff")
    a(f"s_mov_b32 s{S_IT}, 0")
    a.label("L_attn_slow_loop")
    a(f"ds_read_b128 {vr(V_K, 4)}, v{V_A} offset:0")
    vread(V_V, 1024)
    vread(V_V + 4, 1024 + 256)
    a(f"s_waitcnt lgkmcnt(0)")
    mf(S0, V_K, V_QH, "0")
    if not round_scores:
        mf(S0, V_K, V_QL, vr(S0, 16))
    a("s_nop 15")
    a("s_nop 3")
    if round_scores:
        for i in range(16):
            a(f"v_cvt_pk_bf16_f32 v{S0 + i}, 0, v{S0 + i}")
            a(f"v_mul_f32 v{S0 + i}, v{V_C}, v{S0 + i}")
    tile_max(S0, V_T, V_T + 1)
    a(f"v_max_f32 v{V_T}, v{V_T}, v{V_M}")
    a(f"v_sub_f32 v{V_T + 1}, v{V_M}, v{V_T}")
    a(f"v_exp_f32 v{V_T + 1}, v{V_T + 1}")
    a(f"v_mov_b32 v{V_M}, v{V_T}")
    for i in range(16):
        a(f"v_mul_f32 v{V_O + i}, v{V_O + i}, v{V_T + 1}")
    for i in range(16):
        a(f"v_sub_f32 v{S0 + i}, v{S0 + i}, v{V_M}")
        a(f"v_exp_f32 v{S0 + i}, v{S0 + i}")
    a("s_nop 0")
    for i in range(8):
        cv(S0, i)
    a("s_nop 1")
    mf(V_O, V_V, V_P, vr(V_O, 16))
    mf(V_O, V_V + 4, V_P + 4, vr(V_O, 16))
    a("s_nop 15")
    a("s_nop 3")
    a(f"v_add_u32 v{V_A}, 0x800, v{V_A}")
    a(f"s_add_u32 s{S_IT}, s{S_IT}, 1")
    a(f"s_cmp_lt_u32 s{S_IT}, 64")
    a(f"s_cbranch_scc1 L_attn_slow_loop")
    a(f"s_branch L_attn_epi")
    return K, NV


def gen_out(a):
    K = "out_kernel"
    kernel_begin(a, K)
    S_WOA, S_WOB, S_OUT, S_WS = 4, 6, 8, 10
    R_WA, R_WB, R_OUT, R_WS = 12, 16, 20, 24
    S_TB, S_CB, S_WAVE, S_TT, S_CT = 28, 29, 30, 31, 32
    S_T0, S_T1, S_T2 = 33, 34, 35
    S_OB = 36
    S_WB = 37
    S_M0 = 38
    V_LANE, V_L16, V_WOFF, V_WA = 1, 2, 3, 4
    V_T = 5
    V_G, V_OMG = 12, 13
    V_WA2 = 14
    V_WF = 16
    V_OFR = 24
    V_ACC = 88
    NV = 120

    a(f"s_cmp_ge_u32 s2, 256")
    a(f"s_cbranch_scc1 L_out_end")
    a(f"s_load_dwordx2 s[{S_WOA}:{S_WOA + 1}], s[0:1], 32")
    a(f"s_load_dwordx2 s[{S_WOB}:{S_WOB + 1}], s[0:1], 56")
    a(f"s_load_dwordx2 s[{S_OUT}:{S_OUT + 1}], s[0:1], 72")
    a(f"s_load_dwordx2 s[{S_WS}:{S_WS + 1}], s[0:1], 88")
    a(f"v_and_b32 v{V_LANE}, 63, v0")
    a(f"v_lshrrev_b32 v{V_T}, 6, v0")
    a(f"v_lshlrev_b32 v{V_L16}, 4, v{V_LANE}")
    a(f"v_readfirstlane_b32 s{S_WAVE}, v{V_T}")
    a(f"s_and_b32 s{S_CB}, s2, 7")
    a(f"s_lshr_b32 s{S_TB}, s2, 3")
    a(f"s_nop 2")
    a(f"s_and_b32 s{S_TT}, s{S_WAVE}, 1")
    a(f"s_lshr_b32 s{S_CT}, s{S_WAVE}, 1")
    a(f"v_lshrrev_b32 v{V_T}, 3, v{V_LANE}")
    a(f"v_lshlrev_b32 v{V_T + 1}, 10, v{V_T}")
    a(f"v_lshrrev_b32 v{V_T}, 1, v{V_T}")
    a(f"v_and_b32 v{V_T}, 1, v{V_T}")
    a(f"v_lshlrev_b32 v{V_T}, 2, v{V_T}")
    a(f"v_and_b32 v{V_T + 2}, 7, v{V_LANE}")
    a(f"v_xor_b32 v{V_T}, v{V_T}, v{V_T + 2}")
    a(f"v_lshlrev_b32 v{V_T}, 4, v{V_T}")
    a(f"v_add_u32 v{V_WOFF}, v{V_T}, v{V_T + 1}")
    a(f"v_lshrrev_b32 v{V_T}, 5, v{V_LANE}")
    a(f"v_lshrrev_b32 v{V_T + 1}, 2, v{V_LANE}")
    a(f"v_and_b32 v{V_T + 1}, 3, v{V_T + 1}")
    a(f"v_lshl_add_u32 v{V_T}, v{V_T}, 2, v{V_T + 1}")
    a(f"v_lshlrev_b32 v{V_T}, 7, v{V_T}")
    a(f"v_lshrrev_b32 v{V_T + 1}, 1, v{V_T + 1}")
    a(f"v_xor_b32 v{V_T + 1}, s{S_CT}, v{V_T + 1}")
    a(f"v_lshlrev_b32 v{V_T + 1}, 6, v{V_T + 1}")
    a(f"v_add_u32 v{V_T}, v{V_T}, v{V_T + 1}")
    a(f"v_lshrrev_b32 v{V_T + 1}, 4, v{V_LANE}")
    a(f"v_and_b32 v{V_T + 1}, 1, v{V_T + 1}")
    a(f"v_lshlrev_b32 v{V_T + 1}, 5, v{V_T + 1}")
    a(f"v_add_u32 v{V_T}, v{V_T}, v{V_T + 1}")
    a(f"v_and_b32 v{V_T + 1}, 3, v{V_LANE}")
    a(f"v_lshlrev_b32 v{V_T + 1}, 3, v{V_T + 1}")
    a(f"v_add_u32 v{V_WA}, v{V_T}, v{V_T + 1}")
    a(f"v_add_u32 v{V_WA2}, 0x10000, v{V_WA}")
    a(f"s_waitcnt lgkmcnt(0)")
    srd(a, R_WA, S_WOA, 512 * 1024)
    srd(a, R_WB, S_WOB, 512 * 1024)
    srd(a, R_OUT, S_OUT, 2048 * 1024)
    srd(a, R_WS, S_WS, WS_SIZE)
    a(f"s_lshl_b32 s{S_T0}, s{S_TB}, 1")
    a(f"s_add_u32 s{S_T0}, s{S_T0}, s{S_TT}")
    a(f"s_lshl_b32 s{S_OB}, s{S_T0}, 10")
    a(f"s_add_u32 s{S_OB}, s{S_OB}, {OF_OFF}")
    a(f"s_lshl_b32 s{S_WB}, s{S_CB}, 7")
    a(f"s_lshl_b32 s{S_T0}, s{S_WAVE}, 15")
    a(f"s_add_u32 s{S_WB}, s{S_WB}, s{S_T0}")
    a(f"s_lshl_b32 s{S_M0}, s{S_WAVE}, 12")
    for i in range(32):
        a(f"v_mov_b32 v{V_ACC + i}, 0")

    queue = []

    def dma_w(stage):
        br, st = stage >> 2, stage & 3
        R = R_WA if br == 0 else R_WB
        for q in range(4):
            a(f"s_add_u32 m0, s{S_M0}, {stage * 16384 + q * 1024}")
            a(f"s_add_u32 s{S_T0}, s{S_WB}, {st * 131072 + q * 8192}")
            a(f"buffer_load_dwordx4 v{V_WOFF}, s[{R}:{R + 3}], s{S_T0} offen lds")
            queue.append(("W", stage))

    def load_o(stage):
        buf = stage & 1
        for s in range(8):
            head = stage * 8 + s
            a(f"s_add_u32 s{S_T0}, s{S_OB}, {head * 65536}")
            a(f"buffer_load_dwordx4 {vr(V_OFR + 32 * buf + 4 * s, 4)}, v{V_L16}, s[{R_WS}:{R_WS + 3}], s{S_T0} offen")
            queue.append(("O", stage))

    def wait_for(stage):
        idx = max(i for i, (k, s) in enumerate(queue) if s == stage and k in ("W", "O"))
        n = len(queue) - 1 - idx
        a(f"s_waitcnt vmcnt({n})")
        del queue[: idx + 1]

    dma_w(0)
    load_o(0)
    dma_w(1)
    load_o(1)
    a(f"v_and_b32 v{V_T}, 31, v{V_LANE}")
    a(f"v_lshlrev_b32 v{V_T}, 2, v{V_T}")
    a(f"s_lshl_b32 s{S_T0}, s{S_TB}, 1")
    a(f"s_add_u32 s{S_T0}, s{S_T0}, s{S_TT}")
    a(f"s_lshl_b32 s{S_T0}, s{S_T0}, 7")
    a(f"s_add_u32 s{S_T0}, s{S_T0}, {G_OFF}")
    a(f"buffer_load_dword v{V_G}, v{V_T}, s[{R_WS}:{R_WS + 3}], s{S_T0} offen")
    a(f"s_add_u32 s{S_T0}, s{S_T0}, 8192")
    a(f"buffer_load_dword v{V_OMG}, v{V_T}, s[{R_WS}:{R_WS + 3}], s{S_T0} offen")
    queue.append(("G", -1))
    queue.append(("G", -1))
    for st in range(2, 8):
        dma_w(st)
    for stage in range(8):
        wait_for(stage)
        a("s_barrier")
        br = stage >> 2
        buf = stage & 1
        acc = vr(V_ACC + 16 * br, 16)

        def rd(s, wb):
            off = (stage & 3) * 16384 + s * 2048
            wa = V_WA if stage < 4 else V_WA2
            a(f"ds_read_b64_tr_b16 {vr(V_WF + 4 * wb, 2)}, v{wa} offset:{off}")
            a(f"ds_read_b64_tr_b16 {vr(V_WF + 4 * wb + 2, 2)}, v{wa} offset:{off + 1024}")
        rd(0, 0)
        for s in range(8):
            if s < 7:
                rd(s + 1, (s + 1) & 1)
                a("s_waitcnt lgkmcnt(2)")
            else:
                a("s_waitcnt lgkmcnt(0)")
            a(f"v_mfma_f32_32x32x16_bf16 {acc}, {vr(V_WF + 4 * (s & 1), 4)}, {vr(V_OFR + 32 * buf + 4 * s, 4)}, {acc}")
        if stage + 2 < 8:
            load_o(stage + 2)
    a("s_waitcnt vmcnt(0)")
    a("s_nop 15")
    for i in range(16):
        A, B = V_ACC + i, V_ACC + 16 + i
        a(f"v_cvt_pk_bf16_f32 v{A}, 0, v{A}")
        a(f"v_cvt_pk_bf16_f32 v{B}, 0, v{B}")
        a(f"v_mul_f32 v{A}, v{V_G}, v{A}")
        a(f"v_mul_f32 v{B}, v{V_OMG}, v{B}")
        a(f"v_cvt_pk_bf16_f32 v{A}, 0, v{A}")
        a(f"v_cvt_pk_bf16_f32 v{B}, 0, v{B}")
        a(f"v_add_f32 v{A}, v{A}, v{B}")
    a(f"v_and_b32 v{V_T}, 31, v{V_LANE}")
    a(f"v_lshlrev_b32 v{V_T}, 10, v{V_T}")
    a(f"v_lshrrev_b32 v{V_T + 1}, 5, v{V_LANE}")
    a(f"v_lshlrev_b32 v{V_T + 1}, 3, v{V_T + 1}")
    a(f"v_add_u32 v{V_T}, v{V_T}, v{V_T + 1}")
    a(f"s_lshl_b32 s{S_T0}, s{S_TB}, 1")
    a(f"s_add_u32 s{S_T0}, s{S_T0}, s{S_TT}")
    a(f"s_lshl_b32 s{S_T0}, s{S_T0}, 15")
    a(f"s_lshl_b32 s{S_T1}, s{S_CB}, 7")
    a(f"s_add_u32 s{S_T0}, s{S_T0}, s{S_T1}")
    a(f"s_lshl_b32 s{S_T1}, s{S_CT}, 6")
    a(f"s_add_u32 s{S_T0}, s{S_T0}, s{S_T1}")
    for q in range(4):
        d = V_OFR + 2 * q
        a(f"v_cvt_pk_bf16_f32 v{d}, v{V_ACC + 4 * q}, v{V_ACC + 4 * q + 1}")
        a(f"v_cvt_pk_bf16_f32 v{d + 1}, v{V_ACC + 4 * q + 2}, v{V_ACC + 4 * q + 3}")
        a(f"buffer_store_dwordx2 {vr(d, 2)}, v{V_T}, s[{R_OUT}:{R_OUT + 3}], s{S_T0} offen offset:{16 * q}")
    a.label("L_out_end")
    a("s_endpgm")
    return K, NV


def main():
    round_scores = "--round" in sys.argv
    out = [x for x in sys.argv[1:] if not x.startswith("--")]
    a = Asm()
    a.raw("; @launch kernel=proj_kernel grid=(272,1,1) block=(256,1,1) lds=65536")
    a.raw("; @launch kernel=attn_kernel grid=(256,1,1) block=(1024,1,1) lds=139264")
    a.raw("; @launch kernel=out_kernel grid=(256,1,1) block=(256,1,1) lds=131072")
    a.raw('.amdgcn_target "amdgcn-amd-amdhsa--gfx950"')
    ks = [gen_proj(a), gen_attn(a, round_scores), gen_out(a)]
    for k, nv in ks:
        kernel_desc(a, k, nv)
    path = out[0] if out else f"cdna_kernels/{NAME}.s"
    open(path, "w").write(a.text())
    print("wrote", path, len(a.lines), "lines")


if __name__ == "__main__":
    main()
```

```python
import sys, struct

NAME = "gated_mix__grouped_kv_mqa__mha_block__prompt"

QF_OFF = 0
KV_OFF = 4 << 20
OF_OFF = 9 << 20
G_OFF = 13 << 20
KB_OFF = 16 << 20
FL_OFF = 13 * (1 << 20) + 65536
WS_SIZE = 20 << 20
ST_OFF = 14 << 20

C_SCALE = 0.25 * 1.4426950408889634


def f32bits(x):
    return struct.unpack("<I", struct.pack("<f", x))[0]


class Asm:
    def __init__(self):
        self.lines = []

    def __call__(self, s):
        for ln in s.strip("\n").split("\n"):
            self.lines.append("    " + ln.strip())

    def label(self, s):
        self.lines.append(s + ":")

    def raw(self, s):
        self.lines.append(s)

    def text(self):
        return "\n".join(self.lines) + "\n"


def vr(b, n=1):
    return f"v{b}" if n == 1 else f"v[{b}:{b + n - 1}]"


def sr(b, n=1):
    return f"s{b}" if n == 1 else f"s[{b}:{b + n - 1}]"


def srd(a, d, base, nbytes):
    a(f"s_mov_b32 s{d}, s{base}")
    a(f"s_and_b32 s{d + 1}, s{base + 1}, 0xffff")
    a(f"s_mov_b32 s{d + 2}, {nbytes}")
    a(f"s_mov_b32 s{d + 3}, 0x00020000")


STAMP = "--stamp" in sys.argv


def stamp(a, i):
    if STAMP:
        a(f"s_memtime s[{60 + 4 * i}:{61 + 4 * i}]")
        a(f"s_memrealtime s[{62 + 4 * i}:{63 + 4 * i}]")
        a(f"s_waitcnt lgkmcnt(0)")


def stamp_store(a, region, s_wave, r_ws, vt, nw=16):
    if not STAMP:
        return
    a(f"s_mul_i32 s80, s2, {nw}")
    a(f"s_add_u32 s80, s80, s{s_wave}")
    a(f"s_lshl_b32 s80, s80, 6")
    a(f"s_add_u32 s80, s80, {ST_OFF + region * 262144}")
    a(f"v_mov_b32 v{vt + 1}, 0")
    a(f"s_mov_b64 exec, 1")
    for i in range(16):
        a(f"v_mov_b32 v{vt}, s{60 + i}")
        a(f"buffer_store_dword v{vt}, v{vt + 1}, s[{r_ws}:{r_ws + 3}], s80 offen offset:{4 * i}")
    a(f"s_mov_b64 exec, -1")


def kernel_begin(a, name):
    a.raw(".text")
    a.raw(f".globl {name}")
    a.raw(".p2align 8")
    a.raw(f".type {name},@function")
    a.label(name)


def kernel_desc(a, name, nvgpr, nsgpr=102):
    acc = (nvgpr + 3) // 4 * 4
    a.raw('.section .rodata,"a"')
    a.raw(".p2align 6")
    a.raw(f".amdhsa_kernel {name}")
    a.raw(f"  .amdhsa_next_free_vgpr {nvgpr}")
    a.raw(f"  .amdhsa_next_free_sgpr {nsgpr}")
    a.raw(f"  .amdhsa_accum_offset {acc}")
    a.raw("  .amdhsa_group_segment_fixed_size 0")
    a.raw("  .amdhsa_kernarg_size 96")
    a.raw("  .amdhsa_user_sgpr_count 2")
    a.raw("  .amdhsa_user_sgpr_kernarg_segment_ptr 1")
    a.raw("  .amdhsa_system_sgpr_workgroup_id_x 1")
    a.raw(".end_amdhsa_kernel")


def gen_proj(a):
    K = "proj_kernel"
    kernel_begin(a, K)
    S_X, S_WQ, S_WK, S_WV, S_WQKV, S_WS = 4, 6, 8, 10, 12, 14
    R_X, R_W, R_WS = 16, 20, 24
    S_TB, S_CB, S_WAVE = 32, 33, 34
    S_XROW = 35
    S_WROW = 36
    S_PITCH = 37
    S_T0, S_T1, S_T2, S_T3 = 38, 39, 40, 41
    S_M0X, S_M0W = 42, 43
    S_P4 = 44
    S_P64 = 45
    S_DBASE, S_HSTR, S_TSTR = 46, 47, 48
    V_LANE = 1
    V_XE, V_XO, V_WOFF = 2, 3, 4
    V_XA = 5
    V_XB = 9
    V_WA, V_WB = 13, 14
    V_T = 15
    V_XF = 20
    V_WF = 52
    V_ACC = 60
    NV = 124
    SPW = 131072

    a(f"s_cmp_ge_u32 s2, 256")
    a(f"s_cbranch_scc1 L_proj_end")
    stamp(a, 0)
    a(f"s_load_dwordx8 s[4:11], s[0:1], 0")
    a(f"s_load_dwordx2 s[12:13], s[0:1], 48")
    a(f"s_load_dwordx2 s[14:15], s[0:1], 88")
    a(f"v_and_b32 v{V_LANE}, 63, v0")
    a(f"v_lshrrev_b32 v{V_T}, 6, v0")
    a(f"s_and_b32 s{S_T0}, s2, 1")
    a(f"s_lshl_b32 s{S_T0}, s{S_T0}, 3")
    a(f"s_lshr_b32 s{S_T1}, s2, 3")
    a(f"s_and_b32 s{S_T2}, s{S_T1}, 7")
    a(f"s_add_u32 s{S_TB}, s{S_T0}, s{S_T2}")
    a(f"s_and_b32 s{S_T0}, s2, 6")
    a(f"s_lshl_b32 s{S_T0}, s{S_T0}, 1")
    a(f"s_lshr_b32 s{S_T1}, s{S_T1}, 3")
    a(f"s_add_u32 s{S_CB}, s{S_T0}, s{S_T1}")
    a(f"v_readfirstlane_b32 s{S_WAVE}, v{V_T}")
    a(f"v_and_b32 v{V_T}, 31, v{V_LANE}")
    a(f"v_lshrrev_b32 v{V_T + 1}, 1, v{V_T}")
    a(f"v_and_b32 v{V_T + 1}, 7, v{V_T + 1}")
    a(f"v_lshrrev_b32 v{V_T + 2}, 5, v{V_LANE}")
    a(f"v_xor_b32 v{V_T + 1}, v{V_T + 1}, v{V_T + 2}")
    a(f"v_lshlrev_b32 v{V_T + 1}, 4, v{V_T + 1}")
    a(f"v_lshlrev_b32 v{V_T}, 7, v{V_T}")
    a(f"v_add_u32 v{V_XA}, v{V_T}, v{V_T + 1}")
    for s in range(1, 4):
        a(f"v_xor_b32 v{V_XA + s}, {32 * s}, v{V_XA}")
    for s in range(4):
        a(f"v_add_u32 v{V_XB + s}, 0x10000, v{V_XA + s}")
    a(f"s_cmp_eq_u32 s{S_WAVE}, 4")
    a(f"s_cbranch_scc1 L_proj_special")
    a(f"v_lshrrev_b32 v{V_T}, 3, v{V_LANE}")
    a(f"v_lshlrev_b32 v{V_T}, 10, v{V_T}")
    a(f"v_and_b32 v{V_T + 1}, 7, v{V_LANE}")
    a(f"v_lshrrev_b32 v{V_T + 2}, 4, v{V_LANE}")
    a(f"v_xor_b32 v{V_T + 1}, v{V_T + 1}, v{V_T + 2}")
    a(f"v_lshlrev_b32 v{V_T + 1}, 4, v{V_T + 1}")
    a(f"v_add_u32 v{V_XE}, v{V_T}, v{V_T + 1}")
    a(f"v_xor_b32 v{V_XO}, 64, v{V_XE}")
    a(f"s_waitcnt lgkmcnt(0)")
    srd(a, R_X, S_X, 2048 * 1024)
    srd(a, R_WS, S_WS, WS_SIZE)
    a(f"s_lshl_b32 s{S_T0}, s{S_TB}, 7")
    a(f"s_lshl_b32 s{S_T1}, s{S_WAVE}, 5")
    a(f"s_add_u32 s{S_T0}, s{S_T0}, s{S_T1}")
    a(f"s_lshl_b32 s{S_XROW}, s{S_T0}, 10")
    a(f"s_lshl_b32 s{S_M0X}, s{S_WAVE}, 12")
    a(f"s_add_u32 s{S_M0W}, s{S_M0X}, 16384")
    a(f"s_cmp_lt_u32 s{S_CB}, 4")
    a(f"s_cselect_b32 s{R_W}, s{S_WQ}, s{S_WQKV}")
    a(f"s_cselect_b32 s{S_T1}, s{S_WQ + 1}, s{S_WQKV + 1}")
    a(f"s_cselect_b32 s{S_PITCH}, 1, 3")
    a(f"s_cselect_b32 s{S_T0}, 0, 4")
    a(f"s_and_b32 s{R_W + 1}, s{S_T1}, 0xffff")
    a(f"s_lshl_b32 s{R_W + 2}, s{S_PITCH}, 19")
    a(f"s_mov_b32 s{R_W + 3}, 0x00020000")
    a(f"s_lshl_b32 s{S_PITCH}, s{S_PITCH}, 10")
    a(f"s_sub_u32 s{S_T0}, s{S_CB}, s{S_T0}")
    a(f"s_lshl_b32 s{S_T0}, s{S_T0}, 8")
    a(f"s_lshl_b32 s{S_P4}, s{S_PITCH}, 2")
    a(f"s_lshl_b32 s{S_P64}, s{S_PITCH}, 6")
    a(f"s_lshl_b32 s{S_T1}, s{S_WAVE}, 4")
    a(f"s_mul_i32 s{S_T1}, s{S_T1}, s{S_PITCH}")
    a(f"s_add_u32 s{S_WROW}, s{S_T0}, s{S_T1}")
    a(f"v_lshrrev_b32 v{V_T}, 4, v{V_LANE}")
    a(f"v_mul_lo_u32 v{V_T + 1}, v{V_T}, s{S_PITCH}")
    a(f"v_lshlrev_b32 v{V_T}, 2, v{V_T}")
    a(f"v_and_b32 v{V_T + 2}, 15, v{V_LANE}")
    a(f"v_xor_b32 v{V_T}, v{V_T}, v{V_T + 2}")
    a(f"v_lshlrev_b32 v{V_T}, 4, v{V_T}")
    a(f"v_add_u32 v{V_WOFF}, v{V_T}, v{V_T + 1}")

    def dma(kc):
        stage = kc & 3
        a(f"s_mul_i32 s{S_T1}, s{S_P64}, {kc}")
        a(f"s_add_u32 s{S_T1}, s{S_T1}, s{S_WROW}")
        for q in range(4):
            a(f"s_add_u32 m0, s{S_M0X}, {stage * 32768 + q * 1024}")
            a(f"s_add_u32 s{S_T0}, s{S_XROW}, {q * 8192 + kc * 128}")
            a(f"buffer_load_dwordx4 v{V_XE if q % 2 == 0 else V_XO}, s[{R_X}:{R_X + 3}], s{S_T0} offen lds")
            a(f"s_add_u32 m0, s{S_M0W}, {stage * 32768 + q * 1024}")
            a(f"s_nop 0")
            a(f"buffer_load_dwordx4 v{V_WOFF}, s[{R_W}:{R_W + 3}], s{S_T1} offen lds")
            if q < 3:
                a(f"s_add_u32 s{S_T1}, s{S_T1}, s{S_P4}")

    for kc in range(3):
        dma(kc)
    a(f"v_lshrrev_b32 v{V_T}, 5, v{V_LANE}")
    a(f"v_lshrrev_b32 v{V_T + 1}, 2, v{V_LANE}")
    a(f"v_and_b32 v{V_T + 1}, 3, v{V_T + 1}")
    a(f"v_lshl_add_u32 v{V_T}, v{V_T}, 3, v{V_T + 1}")
    a(f"v_lshlrev_b32 v{V_T}, 8, v{V_T}")
    a(f"v_xor_b32 v{V_T + 1}, s{S_WAVE}, v{V_T + 1}")
    a(f"v_lshlrev_b32 v{V_T + 1}, 6, v{V_T + 1}")
    a(f"v_add_u32 v{V_T}, v{V_T}, v{V_T + 1}")
    a(f"v_lshrrev_b32 v{V_T + 1}, 4, v{V_LANE}")
    a(f"v_and_b32 v{V_T + 1}, 1, v{V_T + 1}")
    a(f"v_lshlrev_b32 v{V_T + 1}, 5, v{V_T + 1}")
    a(f"v_add_u32 v{V_T}, v{V_T}, v{V_T + 1}")
    a(f"v_and_b32 v{V_T + 1}, 3, v{V_LANE}")
    a(f"v_lshlrev_b32 v{V_T + 1}, 3, v{V_T + 1}")
    a(f"v_add_u32 v{V_WA}, v{V_T}, v{V_T + 1}")
    a(f"v_add_u32 v{V_WB}, 0x10000, v{V_WA}")
    for i in range(64):
        a(f"v_mov_b32 v{V_ACC + i}, 0")

    def reads(kc, s, buf, special_tt=None):
        stage = kc & 3
        xa = (V_XA if stage < 2 else V_XB) + s
        sb = (stage & 1) * 32768
        if special_tt is None:
            wa = V_WA if stage < 2 else V_WB
            for half in range(2):
                a(f"ds_read_b64_tr_b16 {vr(V_WF + 4 * buf + 2 * half, 2)}, v{wa} offset:{sb + 16384 + (16 * s + 4 * half) * 256}")
            for tt in range(4):
                a(f"ds_read_b128 {vr(V_XF + 16 * buf + 4 * tt, 4)}, v{xa} offset:{sb + tt * 4096}")
        else:
            for half in range(2):
                a(f"ds_read_b64_tr_b16 {vr(V_WF + 4 * buf + 2 * half, 2)}, v{V_WA} offset:{(kc * 64 + 16 * s + 4 * half) * 32}")
            a(f"ds_read_b128 {vr(V_XF + 16 * buf, 4)}, v{xa} offset:{sb}")

    def mfmas(buf, typ, ntt):
        for tt in range(ntt):
            xf = vr(V_XF + 16 * buf + 4 * tt, 4)
            wf = vr(V_WF + 4 * buf, 4)
            acc = vr(V_ACC + 16 * tt, 16)
            if typ == "T":
                a(f"v_mfma_f32_32x32x16_bf16 {acc}, {wf}, {xf}, {acc}")
            else:
                a(f"v_mfma_f32_32x32x16_bf16 {acc}, {xf}, {wf}, {acc}")

    def kloop(typ, special):
        nrd = 3 if special else 6
        for kc in range(8):
            if special:
                if kc == 0:
                    a("s_waitcnt vmcnt(0)")
            else:
                a(f"s_waitcnt vmcnt({8 * min(2, 7 - kc)})")
            a("s_barrier")
            if kc == 0 and not special:
                stamp(a, 1)
            if not special and kc + 3 < 8 and "--pabl=dma" not in sys.argv:
                dma(kc + 3)
            sp = 0 if special else None
            if "--pabl=comp" in sys.argv:
                continue
            reads(kc, 0, 0, sp)
            for s in range(4):
                if s < 3:
                    reads(kc, s + 1, (s + 1) & 1, sp)
                    a(f"s_waitcnt lgkmcnt({nrd})")
                else:
                    a("s_waitcnt lgkmcnt(0)")
                mfmas(s & 1, typ, 1 if special else 4)

    def pack_store(tt, half, voff, soff, imm=0):
        b = V_ACC + 16 * tt + 8 * half
        d = V_XF + 4 * ((2 * tt + half) % 8)
        for i in range(4):
            a(f"v_cvt_pk_bf16_f32 v{d + i}, v{b + 2 * i}, v{b + 2 * i + 1}")
        a(f"buffer_store_dwordx4 {vr(d, 4)}, v{voff}, s[{R_WS}:{R_WS + 3}], s{soff} offen offset:{imm}")

    def pack_store_k(tt, half, voff, soff_kv, soff_kb, vmax):
        b = V_ACC + 16 * tt + 8 * half
        d = V_XF + 8 * ((2 * tt + half) % 4)
        for i in range(4):
            a(f"v_cvt_pk_bf16_f32 v{d + i}, v{b + 2 * i}, v{b + 2 * i + 1}")
        a(f"buffer_store_dwordx4 {vr(d, 4)}, v{voff}, s[{R_WS}:{R_WS + 3}], s{soff_kb} offen")
        for i in range(4):
            a(f"v_lshlrev_b32 v{b + 2 * i}, 16, v{d + i}")
            a(f"v_and_b32 v{b + 2 * i + 1}, 0xffff0000, v{d + i}")
            a(f"v_max3_f32 v{vmax}, abs(v{b + 2 * i}), abs(v{b + 2 * i + 1}), v{vmax}")
            a(f"v_cvt_pkrtz_f16_f32 v{d + 4 + i}, v{b + 2 * i}, v{b + 2 * i + 1}")
        a(f"buffer_store_dwordx4 {vr(d + 4, 4)}, v{voff}, s[{R_WS}:{R_WS + 3}], s{soff_kv} offen")

    def flag_store(vmax, s_addr, nl):
        a(f"v_mov_b32 v{V_T + 1}, 0x477fe000")
        a(f"v_cmp_nle_f32 vcc, v{vmax}, v{V_T + 1}")
        a(f"s_cmp_lg_u64 vcc, 0")
        a(f"s_cselect_b32 s{S_T3}, 1, 0")
        a(f"v_mov_b32 v{V_T + 1}, s{S_T3}")
        a(f"v_lshlrev_b32 v{V_T + 2}, 2, v{V_LANE}")
        a(f"s_mov_b64 exec, {(1 << nl) - 1}")
        a(f"buffer_store_dword v{V_T + 1}, v{V_T + 2}, s[{R_WS}:{R_WS + 3}], s{s_addr} offen")
        a(f"s_mov_b64 exec, -1")

    a(f"s_cmp_ge_u32 s{S_CB}, 12")
    a(f"s_cbranch_scc1 L_proj_N")
    kloop("T", False)
    stamp(a, 2)
    a(f"s_lshl_b32 s{S_T0}, s{S_CB}, 2")
    a(f"s_add_u32 s{S_T0}, s{S_T0}, s{S_WAVE}")
    a(f"v_lshlrev_b32 v{V_T}, 4, v{V_LANE}")
    a(f"s_cmp_ge_u32 s{S_T0}, 32")
    a(f"s_cbranch_scc1 L_proj_TK")
    a(f"s_lshl_b32 s{S_DBASE}, s{S_T0}, 17")
    a(f"s_lshl_b32 s{S_T0}, s{S_TB}, 12")
    a(f"s_add_u32 s{S_DBASE}, s{S_DBASE}, s{S_T0}")
    a("s_nop 7")
    for tt in range(4):
        a(f"s_add_u32 s{S_T0}, s{S_DBASE}, 65536")
        pack_store(tt, 0, V_T, S_DBASE)
        pack_store(tt, 1, V_T, S_T0)
        if tt < 3:
            a(f"s_add_u32 s{S_DBASE}, s{S_DBASE}, 1024")
    if STAMP:
        a("s_waitcnt vmcnt(0)")
    stamp(a, 3)
    stamp_store(a, 1, S_WAVE, R_WS, V_T)
    a("s_endpgm")
    a.label("L_proj_TK")
    a(f"s_sub_u32 s{S_T0}, s{S_T0}, 32")
    a(f"s_lshl_b32 s{S_T1}, s{S_T0}, 8")
    a(f"s_lshl_b32 s{S_T2}, s{S_TB}, 4")
    a(f"s_add_u32 s{S_HSTR}, s{S_T1}, s{S_T2}")
    a(f"s_add_u32 s{S_HSTR}, s{S_HSTR}, {FL_OFF}")
    a(f"s_lshl_b32 s{S_DBASE}, s{S_T0}, 18")
    a(f"s_lshl_b32 s{S_T1}, s{S_TB}, 13")
    a(f"s_add_u32 s{S_DBASE}, s{S_DBASE}, s{S_T1}")
    a(f"s_lshr_b32 s{S_TSTR}, s{S_DBASE}, 1")
    a(f"s_add_u32 s{S_DBASE}, s{S_DBASE}, {KV_OFF + 131072}")
    a(f"s_add_u32 s{S_TSTR}, s{S_TSTR}, {KB_OFF + 65536}")
    a(f"v_mov_b32 v{V_T + 3}, 0")
    a("s_nop 3")
    for tt in range(4):
        a(f"s_add_u32 s{S_T0}, s{S_DBASE}, 131072")
        a(f"s_add_u32 s{S_T1}, s{S_TSTR}, 65536")
        pack_store_k(tt, 0, V_T, S_DBASE, S_TSTR, V_T + 3)
        pack_store_k(tt, 1, V_T, S_T0, S_T1, V_T + 3)
        if tt < 3:
            a(f"s_add_u32 s{S_DBASE}, s{S_DBASE}, 2048")
            a(f"s_add_u32 s{S_TSTR}, s{S_TSTR}, 1024")
    flag_store(V_T + 3, S_HSTR, 4)
    if STAMP:
        a("s_waitcnt vmcnt(0)")
    stamp(a, 3)
    stamp_store(a, 1, S_WAVE, R_WS, V_T)
    a("s_endpgm")

    a.label("L_proj_N")
    kloop("N", False)
    stamp(a, 2)
    a(f"s_sub_u32 s{S_T0}, s{S_CB}, 12")
    a(f"s_lshl_b32 s{S_T0}, s{S_T0}, 2")
    a(f"s_add_u32 s{S_T0}, s{S_T0}, s{S_WAVE}")
    a(f"s_lshl_b32 s{S_T0}, s{S_T0}, 18")
    a(f"s_add_u32 s{S_DBASE}, s{S_T0}, {KV_OFF + 131072 + 1024}")
    a(f"s_lshl_b32 s{S_T0}, s{S_TB}, 13")
    a(f"s_add_u32 s{S_DBASE}, s{S_DBASE}, s{S_T0}")
    a(f"v_lshrrev_b32 v{V_T}, 4, v{V_LANE}")
    a(f"v_and_b32 v{V_T}, 1, v{V_T}")
    a(f"v_lshlrev_b32 v{V_T}, 17, v{V_T}")
    a(f"v_lshrrev_b32 v{V_T + 1}, 5, v{V_LANE}")
    a(f"v_lshlrev_b32 v{V_T + 1}, 9, v{V_T + 1}")
    a(f"v_add_u32 v{V_T}, v{V_T}, v{V_T + 1}")
    a(f"v_and_b32 v{V_T + 1}, 15, v{V_LANE}")
    a(f"v_lshlrev_b32 v{V_T + 1}, 4, v{V_T + 1}")
    a(f"v_add_u32 v{V_T}, v{V_T}, v{V_T + 1}")
    a("s_nop 3")
    for tt in range(4):
        pack_store(tt, 0, V_T, S_DBASE, 0)
        pack_store(tt, 1, V_T, S_DBASE, 256)
        if tt < 3:
            a(f"s_add_u32 s{S_DBASE}, s{S_DBASE}, 2048")
    if STAMP:
        a("s_waitcnt vmcnt(0)")
    stamp(a, 3)
    stamp_store(a, 1, S_WAVE, R_WS, V_T)
    a("s_endpgm")

    a.label("L_proj_special")
    a(f"s_cmp_ge_u32 s{S_CB}, 8")
    a(f"s_cbranch_scc1 L_proj_end")
    a(f"s_waitcnt lgkmcnt(0)")
    srd(a, R_WS, S_WS, WS_SIZE)
    a(f"s_cmp_lt_u32 s{S_CB}, 4")
    a(f"s_cselect_b32 s{R_W}, s{S_WK}, s{S_WV}")
    a(f"s_cselect_b32 s{S_T1}, s{S_WK + 1}, s{S_WV + 1}")
    a(f"s_and_b32 s{R_W + 1}, s{S_T1}, 0xffff")
    a(f"s_mov_b32 s{R_W + 2}, 16384")
    a(f"s_mov_b32 s{R_W + 3}, 0x00020000")
    a(f"v_lshlrev_b32 v{V_T}, 4, v{V_LANE}")
    for i in range(16):
        a(f"s_mov_b32 m0, {SPW + i * 1024}")
        a(f"s_mov_b32 s{S_T0}, {i * 1024}")
        a(f"buffer_load_dwordx4 v{V_T}, s[{R_W}:{R_W + 3}], s{S_T0} offen lds")
    a(f"s_and_b32 s{S_T0}, s{S_CB}, 3")
    a(f"s_lshl_b32 s{S_T1}, s{S_T0}, 12")
    for s in range(4):
        a(f"v_add_u32 v{V_XA + s}, s{S_T1}, v{V_XA + s}")
        a(f"v_add_u32 v{V_XB + s}, s{S_T1}, v{V_XB + s}")
    a(f"v_lshrrev_b32 v{V_T}, 5, v{V_LANE}")
    a(f"v_lshrrev_b32 v{V_T + 1}, 2, v{V_LANE}")
    a(f"v_and_b32 v{V_T + 1}, 3, v{V_T + 1}")
    a(f"v_lshl_add_u32 v{V_T}, v{V_T}, 3, v{V_T + 1}")
    a(f"v_lshlrev_b32 v{V_T}, 5, v{V_T}")
    a(f"v_and_b32 v{V_T + 1}, 3, v{V_LANE}")
    a(f"v_lshlrev_b32 v{V_T + 1}, 3, v{V_T + 1}")
    a(f"v_add_u32 v{V_T}, v{V_T}, v{V_T + 1}")
    a(f"v_add_u32 v{V_WA}, {SPW}, v{V_T}")
    for i in range(16):
        a(f"v_mov_b32 v{V_ACC + i}, 0")
    a(f"s_lshl_b32 s{S_T1}, s{S_TB}, 2")
    a(f"s_add_u32 s{S_T0}, s{S_T0}, s{S_T1}")
    a(f"s_lshl_b32 s{S_DBASE}, s{S_T0}, 11")
    a(f"s_add_u32 s{S_DBASE}, s{S_DBASE}, {KV_OFF}")
    a(f"s_cmp_ge_u32 s{S_CB}, 4")
    a(f"s_cbranch_scc1 L_proj_spN")
    kloop("T", True)
    a(f"v_lshlrev_b32 v{V_T}, 4, v{V_LANE}")
    a(f"s_lshl_b32 s{S_TSTR}, s{S_T0}, 10")
    a(f"s_add_u32 s{S_TSTR}, s{S_TSTR}, {KB_OFF}")
    a(f"s_lshl_b32 s{S_HSTR}, s{S_T0}, 2")
    a(f"s_add_u32 s{S_HSTR}, s{S_HSTR}, {FL_OFF + 16 * 256}")
    a(f"v_mov_b32 v{V_T + 3}, 0")
    a("s_nop 15")
    pack_store_k(0, 0, V_T, S_DBASE, S_TSTR, V_T + 3)
    flag_store(V_T + 3, S_HSTR, 1)
    a("s_endpgm")
    a.label("L_proj_spN")
    kloop("N", True)
    a(f"v_lshrrev_b32 v{V_T + 1}, 5, v{V_LANE}")
    a(f"v_lshlrev_b32 v{V_T + 1}, 9, v{V_T + 1}")
    a(f"v_and_b32 v{V_T}, 15, v{V_LANE}")
    a(f"v_lshlrev_b32 v{V_T}, 4, v{V_T}")
    a(f"v_add_u32 v{V_T}, v{V_T}, v{V_T + 1}")
    a(f"v_and_b32 v{V_T + 1}, 16, v{V_LANE}")
    a(f"v_mov_b32 v{V_T + 2}, 0x40000000")
    a(f"v_cmp_eq_u32 vcc, 0, v{V_T + 1}")
    a(f"s_nop 7")
    a(f"v_cndmask_b32 v{V_T}, v{V_T + 2}, v{V_T}, vcc")
    a(f"s_nop 3")
    pack_store(0, 0, V_T, S_DBASE, 1024)
    pack_store(0, 1, V_T, S_DBASE, 1024 + 256)
    a.label("L_proj_end")
    a("s_endpgm")
    return K, NV


def gen_attn(a, bias=24.0):
    K = "attn_kernel"
    kernel_begin(a, K)
    S_X, S_GW, S_WS = 4, 6, 8
    R_WS, R_X, R_GW = 12, 16, 20
    S_WAVE, S_HEAD, S_QT, S_KV = 24, 25, 26, 27
    S_T0, S_T1, S_T2 = 28, 29, 30
    S_KVH = 31
    S_MASK = 32
    S_IT = 34
    S_G, S_OMG = 35, 36
    S_SLOW = 38
    S_QOFF = 40
    V_LANE = 1
    V_L16 = 2
    V_A = 3
    V_T = 4
    V_QH, V_QL = 12, 16
    V_K = 20
    V_V = 28
    V_P = 36
    V_M = 44
    V_C = 45
    V_NM = 48
    V_S = 64
    V_O = 96
    NV = 112
    ABL = [x[6:] for x in sys.argv if x.startswith("--abl=")]

    a(f"s_cmp_ge_u32 s2, 256")
    a(f"s_cbranch_scc1 L_attn_end")
    stamp(a, 0)
    a(f"s_load_dwordx2 s[{S_WS}:{S_WS + 1}], s[0:1], 88")
    a(f"s_load_dwordx2 s[{S_X}:{S_X + 1}], s[0:1], 0")
    a(f"s_load_dwordx2 s[{S_GW}:{S_GW + 1}], s[0:1], 64")
    a(f"v_and_b32 v{V_LANE}, 63, v0")
    a(f"v_lshrrev_b32 v{V_T}, 6, v0")
    a(f"v_lshlrev_b32 v{V_L16}, 4, v{V_LANE}")
    a(f"v_readfirstlane_b32 s{S_WAVE}, v{V_T}")
    a(f"s_and_b32 s{S_T0}, s2, 7")
    a(f"s_lshr_b32 s{S_T1}, s2, 3")
    a(f"s_and_b32 s{S_T2}, s{S_T1}, 3")
    a(f"s_lshr_b32 s{S_T1}, s{S_T1}, 2")
    a(f"s_lshl_b32 s{S_T1}, s{S_T1}, 3")
    a(f"s_add_u32 s{S_HEAD}, s{S_T1}, s{S_T0}")
    a(f"s_lshl_b32 s{S_QT}, s{S_T2}, 4")
    a(f"s_add_u32 s{S_QT}, s{S_QT}, s{S_WAVE}")
    a(f"s_sub_u32 s{S_T0}, s{S_HEAD}, 31")
    a(f"s_cmp_lt_u32 s{S_HEAD}, 32")
    a(f"s_cselect_b32 s{S_KVH}, 0, s{S_T0}")
    a(f"s_lshl_b32 s{S_KV}, s{S_KVH}, 17")
    a(f"s_add_u32 s{S_KV}, s{S_KV}, {KV_OFF}")
    a(f"s_mov_b32 s{S_MASK}, 0x0000ffff")
    a(f"s_mov_b32 s{S_MASK + 1}, 0x0000ffff")
    a(f"s_lshl_b32 s{S_T0}, s{S_HEAD}, 16")
    a(f"s_lshl_b32 s{S_T1}, s{S_QT}, 10")
    a(f"s_add_u32 s{S_QOFF}, s{S_T0}, s{S_T1}")
    a(f"s_lshl_b32 s{S_T0}, s{S_WAVE}, 10")
    a(f"s_add_u32 s{S_T1}, s{S_T0}, s{S_KV}")
    a(f"s_waitcnt lgkmcnt(0)")
    srd(a, R_WS, S_WS, WS_SIZE)
    a(f"s_mov_b32 m0, s{S_T0}")
    a(f"s_nop 0")
    a(f"buffer_load_dwordx4 v{V_L16}, s[{R_WS}:{R_WS + 3}], s{S_T1} offen lds")
    a(f"buffer_load_dwordx4 {vr(V_S, 4)}, v{V_L16}, s[{R_WS}:{R_WS + 3}], s{S_QOFF} offen")
    a(f"s_sub_u32 s{S_T2}, s{S_KVH}, 1")
    a(f"s_lshr_b32 s{S_T2}, s{S_T2}, 1")
    a(f"s_cmp_eq_u32 s{S_KVH}, 0")
    a(f"s_cselect_b32 s{S_T2}, 16, s{S_T2}")
    a(f"s_lshl_b32 s{S_T2}, s{S_T2}, 8")
    a(f"s_add_u32 s{S_T2}, s{S_T2}, {FL_OFF}")
    a(f"v_lshlrev_b32 v{V_T}, 2, v{V_LANE}")
    a(f"buffer_load_dword v{V_S + 12}, v{V_T}, s[{R_WS}:{R_WS + 3}], s{S_T2} offen")
    srd(a, R_X, S_X, 2048 * 1024)
    srd(a, R_GW, S_GW, 1024)
    a(f"s_and_b32 s{S_T2}, s{S_WAVE}, 7")
    a(f"s_lshl_b32 s{S_IT}, s2, 3")
    a(f"s_add_u32 s{S_T2}, s{S_T2}, s{S_IT}")
    a(f"s_lshl_b32 s{S_T2}, s{S_T2}, 10")
    a(f"buffer_load_dwordx4 {vr(V_S + 4, 4)}, v{V_L16}, s[{R_X}:{R_X + 3}], s{S_T2} offen")
    a(f"buffer_load_dwordx4 {vr(V_S + 8, 4)}, v{V_L16}, s[{R_GW}:{R_GW + 3}], 0 offen")
    for i in range(1, 8):
        a(f"s_add_u32 m0, s{S_T0}, {i * 16384}")
        a(f"s_add_u32 s{S_T2}, s{S_T1}, {i * 16384}")
        a(f"buffer_load_dwordx4 v{V_L16}, s[{R_WS}:{R_WS + 3}], s{S_T2} offen lds")
    a(f"v_and_b32 v{V_T}, 27, v{V_LANE}")
    a(f"v_cmp_eq_u32 vcc, 16, v{V_T}")
    a(f"v_mov_b32 v{V_T + 1}, 0x3f803f80")
    a(f"s_nop 1")
    for i in range(8):
        a(f"v_cndmask_b32 v{V_V + i}, 0, v{V_T + 1}, vcc")
    for i in range(16):
        a(f"v_mov_b32 v{V_O + i}, 0")
    a(f"v_mov_b32 v{V_C}, {f32bits(C_SCALE):#x}")
    a(f"v_mov_b32 v{V_A}, v{V_L16}")
    a(f"s_waitcnt vmcnt(9)")
    a(f"v_mov_b32 v{V_T + 4}, 0")
    for i in range(4):
        q = V_S + i
        a(f"v_lshlrev_b32 v{V_T}, 16, v{q}")
        a(f"v_and_b32 v{V_T + 1}, 0xffff0000, v{q}")
        a(f"v_mul_f32 v{V_T}, v{V_C}, v{V_T}")
        a(f"v_mul_f32 v{V_T + 1}, v{V_C}, v{V_T + 1}")
        a(f"v_max3_f32 v{V_T + 4}, abs(v{V_T}), abs(v{V_T + 1}), v{V_T + 4}")
        a(f"v_cvt_f16_f32 v{V_T}, v{V_T}")
        a(f"v_cvt_f16_f32 v{V_T + 1}, v{V_T + 1}")
        a(f"v_pack_b32_f16 v{V_QH + i}, v{V_T}, v{V_T + 1}")
    a(f"v_mov_b32 v{V_T}, 0x477fe000")
    a(f"v_cmp_nle_f32 vcc, v{V_T + 4}, v{V_T}")
    a(f"s_mov_b64 s[{S_SLOW}:{S_SLOW + 1}], vcc")
    a(f"v_cmp_ne_u32 vcc, 0, v{V_S + 12}")
    a(f"s_or_b64 s[{S_SLOW}:{S_SLOW + 1}], s[{S_SLOW}:{S_SLOW + 1}], vcc")
    a(f"s_barrier")
    stamp(a, 1)

    def mf(d, A, B, c, ty="bf16"):
        a(f"v_mfma_f32_32x32x16_{ty} {vr(d, 16)}, {vr(A, 4)}, {vr(B, 4)}, {c}")

    def vread(dst, off):
        a(f"s_mov_b64 exec, s[{S_MASK}:{S_MASK + 1}]")
        a(f"ds_read_b128 {vr(dst, 4)}, v{V_A} offset:{off}")
        a(f"s_mov_b64 exec, -1")

    def tile_max(S, dst, tmp):
        a(f"v_max3_f32 v{dst}, v{S}, v{S + 1}, v{S + 2}")
        for i in range(3, 15, 2):
            a(f"v_max3_f32 v{dst}, v{dst}, v{S + i}, v{S + i + 1}")
        a(f"v_max_f32 v{dst}, v{dst}, v{S + 15}")
        a(f"v_mov_b32 v{tmp}, v{dst}")
        a(f"s_nop 1")
        a(f"v_permlane32_swap_b32 v{dst}, v{tmp}")
        a(f"s_nop 1")
        a(f"v_max_f32 v{dst}, v{dst}, v{tmp}")

    a(f"ds_read_b128 {vr(V_K, 4)}, v{V_A} offset:0")
    a(f"ds_read_b128 {vr(V_K + 4, 4)}, v{V_A} offset:2048")
    vread(V_V, 1024)
    a(f"s_waitcnt lgkmcnt(2)")
    mf(V_NM, V_K, V_QH, "0", "f16")
    a(f"s_waitcnt vmcnt(7)")
    a(f"v_mov_b32 v{V_T + 4}, 0")
    for i in range(4):
        x, g = V_S + 4 + i, V_S + 8 + i
        a(f"v_lshlrev_b32 v{V_T}, 16, v{x}")
        a(f"v_and_b32 v{V_T + 1}, 0xffff0000, v{x}")
        a(f"v_lshlrev_b32 v{V_T + 2}, 16, v{g}")
        a(f"v_and_b32 v{V_T + 3}, 0xffff0000, v{g}")
        a(f"v_mul_f32 v{V_T}, v{V_T}, v{V_T + 2}")
        a(f"v_mul_f32 v{V_T + 1}, v{V_T + 1}, v{V_T + 3}")
        a(f"v_cvt_pk_bf16_f32 v{V_T}, v{V_T}, v{V_T + 1}")
        a(f"v_lshlrev_b32 v{V_T + 1}, 16, v{V_T}")
        a(f"v_and_b32 v{V_T}, 0xffff0000, v{V_T}")
        a(f"v_add_f32 v{V_T + 4}, v{V_T + 4}, v{V_T + 1}")
        a(f"v_add_f32 v{V_T + 4}, v{V_T + 4}, v{V_T}")
    for (ctrl) in ("quad_perm:[1,0,3,2]", "quad_perm:[2,3,0,1]", "row_half_mirror", "row_mirror"):
        a(f"s_nop 1")
        a(f"v_add_f32_dpp v{V_T}, v{V_T + 4}, v{V_T + 4} {ctrl} row_mask:0xf bank_mask:0xf")
        a(f"v_mov_b32 v{V_T + 4}, v{V_T}")
    a(f"s_nop 1")
    a(f"v_permlane16_swap_b32 v{V_T}, v{V_T + 4}")
    a(f"s_nop 1")
    a(f"v_add_f32 v{V_T + 4}, v{V_T}, v{V_T + 4}")
    a(f"v_mov_b32 v{V_T}, v{V_T + 4}")
    a(f"s_nop 1")
    a(f"v_permlane32_swap_b32 v{V_T}, v{V_T + 4}")
    a(f"s_nop 1")
    a(f"v_add_f32 v{V_T}, v{V_T}, v{V_T + 4}")
    a(f"v_cvt_pk_bf16_f32 v{V_T}, 0, v{V_T}")
    a(f"v_mul_f32 v{V_T}, {f32bits(-1.4426950408889634):#x}, v{V_T}")
    a(f"v_exp_f32 v{V_T}, v{V_T}")
    a(f"s_nop 0")
    a(f"v_add_f32 v{V_T}, 1.0, v{V_T}")
    a(f"v_rcp_f32 v{V_T}, v{V_T}")
    a(f"s_nop 0")
    a(f"v_cvt_pk_bf16_f32 v{V_T}, 0, v{V_T}")
    a(f"v_sub_f32 v{V_T + 1}, 1.0, v{V_T}")
    a(f"v_cvt_pk_bf16_f32 v{V_T + 1}, 0, v{V_T + 1}")
    a(f"s_nop 0")
    a(f"v_readfirstlane_b32 s{S_G}, v{V_T}")
    a(f"v_readfirstlane_b32 s{S_OMG}, v{V_T + 1}")
    S0 = V_S
    tile_max(V_NM, V_T, V_T + 1)
    a(f"v_sub_f32 v{V_T}, {f32bits(-bias):#x}, v{V_T}")
    for i in range(16):
        a(f"v_add_f32 v{S0 + i}, v{V_NM + i}, v{V_T}")
    for i in range(16):
        a(f"v_mov_b32 v{V_NM + i}, v{V_T}")
    for i in range(4, 8):
        a(f"v_mov_b32 v{V_P + i}, 0")
    a(f"s_mov_b32 s{S_IT}, 0")

    def ex(A, i):
        if "exp" not in ABL:
            a(f"v_exp_f32 v{A + i}, v{A + i}")

    def cv(A, i):
        if "cvt" not in ABL:
            a(f"v_cvt_pk_bf16_f32 v{V_P + i}, v{A + 2 * i}, v{A + 2 * i + 1}")

    def sub_iter(par):
        A = V_S + 16 * par
        B = V_S + 16 * (par ^ 1)
        Kn = V_K + 4 * (par ^ 1)
        Kp = V_K + 4 * par
        base = 2048 * par
        a(f"s_waitcnt lgkmcnt(1)")
        mf(B, Kn, V_QH, vr(V_NM, 16), "f16")
        a(f"ds_read_b128 {vr(Kp, 4)}, v{V_A} offset:{base + 4096}")
        for i in range(0, 5):
            ex(A, i)
        mf(V_O, V_V + 4, V_P + 4, vr(V_O, 16))
        vread(V_V + 4, base + 1024 + 256)
        for i in range(5, 8):
            ex(A, i)
        for i in range(0, 4):
            cv(A, i)
        for i in range(8, 10):
            ex(A, i)
        a(f"s_waitcnt lgkmcnt(2)")
        mf(V_O, V_V, V_P, vr(V_O, 16))
        vread(V_V, base + 2048 + 1024)
        for i in range(10, 16):
            ex(A, i)
        for i in range(4, 8):
            cv(A, i)

    ladder = [(0, 3), (40, 2), (56, 1), (60, 0)]
    for x in sys.argv:
        if x.startswith("--ladder="):
            bs = [int(v) for v in x.split("=")[1].split(",")]
            ladder = [(0, 3)] + [(b, 2 - i) for i, b in enumerate(bs)]
    a("s_setprio 3")
    a.label("L_attn_loop")
    for u in range(4):
        for (t0, pr) in ladder:
            if t0 > 0 and (t0 % 8) // 2 == u:
                a(f"s_cmp_eq_u32 s{S_IT}, {t0 // 8}")
                a(f"s_cbranch_scc0 L_attn_np{t0}")
                a(f"s_setprio {pr}")
                a.label(f"L_attn_np{t0}")
        if u == 2:
            a(f"s_cmp_eq_u32 s{S_IT}, 0")
            a(f"s_cbranch_scc0 L_attn_nobar")
            a(f"s_waitcnt vmcnt(0)")
            a(f"s_barrier")
            a.label("L_attn_nobar")
        sub_iter(0)
        sub_iter(1)
        a(f"v_add_u32 v{V_A}, 0x1000, v{V_A}")
    a(f"s_add_u32 s{S_IT}, s{S_IT}, 1")
    a(f"s_cmp_lt_u32 s{S_IT}, 8")
    a(f"s_cbranch_scc1 L_attn_loop")
    a(f"s_waitcnt lgkmcnt(0)")
    stamp(a, 2)
    mf(V_O, V_V + 4, V_P + 4, vr(V_O, 16))
    a("s_nop 15")
    a("s_nop 3")
    a(f"v_mov_b32 v{V_T}, {f32bits(2.0 ** 120):#x}")
    a(f"v_cmp_nlt_f32 vcc, v{V_O + 8}, v{V_T}")
    a(f"s_or_b64 s[{S_SLOW}:{S_SLOW + 1}], s[{S_SLOW}:{S_SLOW + 1}], vcc")
    for i in range(8):
        a(f"v_cmp_nlt_f32 vcc, abs(v{V_O + i}), v{V_T}")
        a(f"s_or_b64 s[{S_SLOW}:{S_SLOW + 1}], s[{S_SLOW}:{S_SLOW + 1}], vcc")
    if "--forceslow" in sys.argv:
        a(f"s_branch L_attn_slow")
    a(f"s_cmp_eq_u64 s[{S_SLOW}:{S_SLOW + 1}], 0")
    a(f"s_cbranch_scc0 L_attn_slow")
    a.label("L_attn_epi")
    a(f"v_rcp_f32 v{V_T}, v{V_O + 8}")
    a("s_nop 0")
    for i in range(8):
        a(f"v_mul_f32 v{V_O + i}, v{V_O + i}, v{V_T}")
    for i in range(4):
        a(f"v_cvt_pk_bf16_f32 v{V_P + i}, v{V_O + 2 * i}, v{V_O + 2 * i + 1}")
    a(f"s_add_u32 s{S_T0}, s{S_QOFF}, {OF_OFF}")
    a(f"buffer_store_dwordx4 {vr(V_P, 4)}, v{V_L16}, s[{R_WS}:{R_WS + 3}], s{S_T0} offen")
    stamp(a, 3)
    stamp_store(a, 0, S_WAVE, R_WS, V_T)
    a(f"s_cmp_ge_u32 s{S_WAVE}, 8")
    a(f"s_cbranch_scc1 L_attn_end")
    a(f"s_lshl_b32 s{S_T1}, s2, 3")
    a(f"s_add_u32 s{S_T0}, s{S_WAVE}, s{S_T1}")
    a(f"s_lshl_b32 s{S_T0}, s{S_T0}, 2")
    a(f"s_add_u32 s{S_T0}, s{S_T0}, {G_OFF}")
    a(f"v_mov_b32 v{V_T}, s{S_G}")
    a(f"v_mov_b32 v{V_T + 1}, s{S_OMG}")
    a(f"v_mov_b32 v{V_T + 2}, 0")
    a(f"s_mov_b64 exec, 1")
    a(f"buffer_store_dword v{V_T}, v{V_T + 2}, s[{R_WS}:{R_WS + 3}], s{S_T0} offen")
    a(f"s_add_u32 s{S_T0}, s{S_T0}, 8192")
    a(f"buffer_store_dword v{V_T + 1}, v{V_T + 2}, s[{R_WS}:{R_WS + 3}], s{S_T0} offen")
    a.label("L_attn_end")
    a("s_endpgm")

    a.label("L_attn_slow")
    a("s_setprio 0")
    a(f"buffer_load_dwordx4 {vr(V_S, 4)}, v{V_L16}, s[{R_WS}:{R_WS + 3}], s{S_QOFF} offen")
    a(f"v_mov_b32 v{V_A}, v{V_L16}")
    for i in range(16):
        a(f"v_mov_b32 v{V_O + i}, 0")
    a(f"v_mov_b32 v{V_M}, 0xff7fffff")
    a(f"s_mov_b32 s{S_IT}, 0")
    a(f"s_lshl_b32 s{S_T2}, s{S_KVH}, 16")
    a(f"s_add_u32 s{S_T2}, s{S_T2}, {KB_OFF}")
    a(f"s_waitcnt vmcnt(0)")
    for i in range(4):
        q = V_S + i
        a(f"v_lshlrev_b32 v{V_T}, 16, v{q}")
        a(f"v_and_b32 v{V_T + 1}, 0xffff0000, v{q}")
        a(f"v_mul_f32 v{V_T}, v{V_C}, v{V_T}")
        a(f"v_mul_f32 v{V_T + 1}, v{V_C}, v{V_T + 1}")
        a(f"v_cvt_pk_bf16_f32 v{V_QH + i}, v{V_T}, v{V_T + 1}")
        a(f"v_lshlrev_b32 v{V_T + 2}, 16, v{V_QH + i}")
        a(f"v_and_b32 v{V_T + 3}, 0xffff0000, v{V_QH + i}")
        a(f"v_sub_f32 v{V_T}, v{V_T}, v{V_T + 2}")
        a(f"v_sub_f32 v{V_T + 1}, v{V_T + 1}, v{V_T + 3}")
        a(f"v_cvt_pk_bf16_f32 v{V_QL + i}, v{V_T}, v{V_T + 1}")
    a.label("L_attn_slow_loop")
    a(f"buffer_load_dwordx4 {vr(V_K, 4)}, v{V_L16}, s[{R_WS}:{R_WS + 3}], s{S_T2} offen")
    vread(V_V, 1024)
    vread(V_V + 4, 1024 + 256)
    a(f"s_waitcnt vmcnt(0) lgkmcnt(0)")
    mf(S0, V_K, V_QH, "0")
    mf(S0, V_K, V_QL, vr(S0, 16))
    a("s_nop 15")
    a("s_nop 3")
    tile_max(S0, V_T, V_T + 1)
    a(f"v_max_f32 v{V_T}, v{V_T}, v{V_M}")
    a(f"v_sub_f32 v{V_T + 1}, v{V_M}, v{V_T}")
    a(f"v_exp_f32 v{V_T + 1}, v{V_T + 1}")
    a(f"v_mov_b32 v{V_M}, v{V_T}")
    for i in range(16):
        a(f"v_mul_f32 v{V_O + i}, v{V_O + i}, v{V_T + 1}")
    for i in range(16):
        a(f"v_sub_f32 v{S0 + i}, v{S0 + i}, v{V_M}")
        a(f"v_exp_f32 v{S0 + i}, v{S0 + i}")
    a("s_nop 0")
    for i in range(8):
        a(f"v_cvt_pk_bf16_f32 v{V_P + i}, v{S0 + 2 * i}, v{S0 + 2 * i + 1}")
    a("s_nop 1")
    mf(V_O, V_V, V_P, vr(V_O, 16))
    mf(V_O, V_V + 4, V_P + 4, vr(V_O, 16))
    a("s_nop 15")
    a("s_nop 3")
    a(f"v_add_u32 v{V_A}, 0x800, v{V_A}")
    a(f"s_add_u32 s{S_T2}, s{S_T2}, 1024")
    a(f"s_add_u32 s{S_IT}, s{S_IT}, 1")
    a(f"s_cmp_lt_u32 s{S_IT}, 64")
    a(f"s_cbranch_scc1 L_attn_slow_loop")
    a(f"s_branch L_attn_epi")
    return K, NV


def gen_out(a):
    K = "out_kernel"
    kernel_begin(a, K)
    S_WOA, S_WOB, S_OUT, S_WS = 4, 6, 8, 10
    R_WA, R_OUT, R_WS = 12, 20, 24
    S_TB, S_CB, S_WAVE, S_TT, S_KH, S_BR = 28, 29, 30, 31, 32, 33
    S_T0, S_T1, S_T2 = 34, 35, 36
    S_OB = 37
    S_WB = 38
    S_M0 = 39
    S_Q = 40
    V_LANE, V_L16, V_WOFF, V_WA = 1, 2, 3, 4
    V_T = 5
    V_G, V_OMG = 12, 13
    V_XA = 14
    V_WA1 = 15
    V_WF = 16
    V_ACC = 32
    V_OFR = 64
    NV = 128

    a(f"s_cmp_ge_u32 s2, 256")
    a(f"s_cbranch_scc1 L_out_end")
    stamp(a, 0)
    a(f"s_load_dwordx2 s[{S_WS}:{S_WS + 1}], s[0:1], 88")
    a(f"s_load_dwordx2 s[{S_WOA}:{S_WOA + 1}], s[0:1], 32")
    a(f"s_load_dwordx2 s[{S_WOB}:{S_WOB + 1}], s[0:1], 56")
    a(f"s_load_dwordx2 s[{S_OUT}:{S_OUT + 1}], s[0:1], 72")
    a(f"v_and_b32 v{V_LANE}, 63, v0")
    a(f"v_lshrrev_b32 v{V_T}, 6, v0")
    a(f"v_lshlrev_b32 v{V_L16}, 4, v{V_LANE}")
    a(f"v_readfirstlane_b32 s{S_WAVE}, v{V_T}")
    a(f"s_and_b32 s{S_T0}, s2, 7")
    a(f"s_lshl_b32 s{S_T0}, s{S_T0}, 2")
    a(f"s_lshr_b32 s{S_T1}, s2, 3")
    a(f"s_and_b32 s{S_T1}, s{S_T1}, 3")
    a(f"s_add_u32 s{S_TB}, s{S_T0}, s{S_T1}")
    a(f"s_lshr_b32 s{S_CB}, s2, 5")
    a(f"s_and_b32 s{S_TT}, s{S_WAVE}, 1")
    a(f"s_lshr_b32 s{S_Q}, s{S_WAVE}, 1")
    a(f"s_and_b32 s{S_KH}, s{S_Q}, 1")
    a(f"s_lshr_b32 s{S_BR}, s{S_WAVE}, 2")
    a(f"v_lshrrev_b32 v{V_T}, 3, v{V_LANE}")
    a(f"v_lshlrev_b32 v{V_T + 1}, 10, v{V_T}")
    a(f"v_lshrrev_b32 v{V_T}, 1, v{V_T}")
    a(f"v_and_b32 v{V_T}, 1, v{V_T}")
    a(f"v_lshlrev_b32 v{V_T}, 2, v{V_T}")
    a(f"v_and_b32 v{V_T + 2}, 7, v{V_LANE}")
    a(f"v_xor_b32 v{V_T}, v{V_T}, v{V_T + 2}")
    a(f"v_lshlrev_b32 v{V_T}, 4, v{V_T}")
    a(f"v_add_u32 v{V_WOFF}, v{V_T}, v{V_T + 1}")
    a(f"s_lshl_b32 s{S_T0}, s{S_TB}, 1")
    a(f"s_add_u32 s{S_T0}, s{S_T0}, s{S_TT}")
    a(f"s_lshl_b32 s{S_OB}, s{S_T0}, 10")
    a(f"s_lshl_b32 s{S_T1}, s{S_Q}, 20")
    a(f"s_add_u32 s{S_OB}, s{S_OB}, s{S_T1}")
    a(f"s_add_u32 s{S_OB}, s{S_OB}, {OF_OFF}")
    a(f"s_lshl_b32 s{S_WB}, s{S_CB}, 7")
    a(f"s_lshl_b32 s{S_T0}, s{S_KH}, 18")
    a(f"s_add_u32 s{S_WB}, s{S_WB}, s{S_T0}")
    a(f"s_lshl_b32 s{S_T0}, s{S_TT}, 15")
    a(f"s_add_u32 s{S_WB}, s{S_WB}, s{S_T0}")
    a(f"s_lshl_b32 s{S_M0}, s{S_Q}, 15")
    a(f"s_lshl_b32 s{S_T0}, s{S_TT}, 12")
    a(f"s_add_u32 s{S_M0}, s{S_M0}, s{S_T0}")
    a(f"s_waitcnt lgkmcnt(0)")
    srd(a, R_WS, S_WS, WS_SIZE)
    a(f"s_cmp_eq_u32 s{S_BR}, 0")
    a(f"s_cselect_b32 s{R_WA}, s{S_WOA}, s{S_WOB}")
    a(f"s_cselect_b32 s{S_T0}, s{S_WOA + 1}, s{S_WOB + 1}")
    a(f"s_and_b32 s{R_WA + 1}, s{S_T0}, 0xffff")
    a(f"s_mov_b32 s{R_WA + 2}, {512 * 1024}")
    a(f"s_mov_b32 s{R_WA + 3}, 0x00020000")

    queue = []

    def dma_w(st):
        for q in range(4):
            a(f"s_add_u32 m0, s{S_M0}, {st * 8192 + q * 1024}")
            a(f"s_add_u32 s{S_T0}, s{S_WB}, {st * 65536 + q * 8192}")
            a(f"buffer_load_dwordx4 v{V_WOFF}, s[{R_WA}:{R_WA + 3}], s{S_T0} offen lds")
            queue.append(("W", st))

    def load_o(st):
        for s in range(4):
            hd = st * 4 + s
            a(f"s_add_u32 s{S_T0}, s{S_OB}, {hd * 65536}")
            a(f"buffer_load_dwordx4 {vr(V_OFR + 4 * hd, 4)}, v{V_L16}, s[{R_WS}:{R_WS + 3}], s{S_T0} offen")
            queue.append(("O", st))

    def wait_for(st):
        idx = max(i for i, (k, s) in enumerate(queue) if s == st and k in ("W", "O"))
        n = len(queue) - 1 - idx
        a(f"s_waitcnt vmcnt({n})")
        del queue[: idx + 1]

    for st in range(4):
        load_o(st)
        dma_w(st)
    a(f"v_and_b32 v{V_T}, 31, v{V_LANE}")
    a(f"v_lshlrev_b32 v{V_T}, 2, v{V_T}")
    a(f"s_lshl_b32 s{S_T0}, s{S_TB}, 1")
    a(f"s_add_u32 s{S_T0}, s{S_T0}, s{S_TT}")
    a(f"s_lshl_b32 s{S_T0}, s{S_T0}, 7")
    a(f"s_add_u32 s{S_T0}, s{S_T0}, {G_OFF}")
    a(f"buffer_load_dword v{V_G}, v{V_T}, s[{R_WS}:{R_WS + 3}], s{S_T0} offen")
    a(f"s_add_u32 s{S_T0}, s{S_T0}, 8192")
    a(f"buffer_load_dword v{V_OMG}, v{V_T}, s[{R_WS}:{R_WS + 3}], s{S_T0} offen")
    queue.append(("G", -1))
    queue.append(("G", -1))
    srd(a, R_OUT, S_OUT, 2048 * 1024)
    a(f"v_lshrrev_b32 v{V_T}, 5, v{V_LANE}")
    a(f"v_lshrrev_b32 v{V_T + 1}, 2, v{V_LANE}")
    a(f"v_and_b32 v{V_T + 1}, 3, v{V_T + 1}")
    a(f"v_lshl_add_u32 v{V_T}, v{V_T}, 2, v{V_T + 1}")
    a(f"v_lshlrev_b32 v{V_T}, 7, v{V_T}")
    a(f"v_lshrrev_b32 v{V_T + 1}, 1, v{V_T + 1}")
    a(f"v_lshlrev_b32 v{V_T + 1}, 6, v{V_T + 1}")
    a(f"v_add_u32 v{V_T}, v{V_T}, v{V_T + 1}")
    a(f"v_lshrrev_b32 v{V_T + 1}, 4, v{V_LANE}")
    a(f"v_and_b32 v{V_T + 1}, 1, v{V_T + 1}")
    a(f"v_lshlrev_b32 v{V_T + 1}, 5, v{V_T + 1}")
    a(f"v_add_u32 v{V_T}, v{V_T}, v{V_T + 1}")
    a(f"v_and_b32 v{V_T + 1}, 3, v{V_LANE}")
    a(f"v_lshlrev_b32 v{V_T + 1}, 3, v{V_T + 1}")
    a(f"v_add_u32 v{V_T}, v{V_T}, v{V_T + 1}")
    a(f"s_lshl_b32 s{S_T0}, s{S_Q}, 15")
    a(f"v_add_u32 v{V_WA}, s{S_T0}, v{V_T}")
    a(f"v_xor_b32 v{V_WA1}, 64, v{V_WA}")
    a(f"s_lshl_b32 s{S_T0}, s{S_WAVE}, 13")
    a(f"v_add_u32 v{V_XA}, s{S_T0}, v{V_L16}")
    for i in range(32):
        a(f"v_mov_b32 v{V_ACC + i}, 0")
    nstep = 0
    for st in range(4):
        wait_for(st)
        a("s_barrier")
        if st == 0:
            stamp(a, 1)

        def rd(s, wb):
            off = st * 8192 + s * 2048
            for ct in range(2):
                wa = V_WA if ct == 0 else V_WA1
                a(f"ds_read_b64_tr_b16 {vr(V_WF + 8 * wb + 4 * ct, 2)}, v{wa} offset:{off}")
                a(f"ds_read_b64_tr_b16 {vr(V_WF + 8 * wb + 4 * ct + 2, 2)}, v{wa} offset:{off + 1024}")
        rd(0, 0)
        for s in range(4):
            if s < 3:
                rd(s + 1, (s + 1) & 1)
                a("s_waitcnt lgkmcnt(4)")
            else:
                a("s_waitcnt lgkmcnt(0)")
            for ct in range(2):
                acc = vr(V_ACC + 16 * ct, 16)
                a(f"v_mfma_f32_32x32x16_bf16 {acc}, {vr(V_WF + 8 * (s & 1) + 4 * ct, 4)}, {vr(V_OFR + 4 * (st * 4 + s), 4)}, {acc}")
    stamp(a, 2)
    a("s_waitcnt vmcnt(0)")
    a("s_barrier")
    a("s_nop 15")
    a(f"s_cmp_eq_u32 s{S_Q}, 0")
    a(f"s_cbranch_scc1 L_out_fin")
    for q in range(8):
        a(f"ds_write_b128 v{V_XA}, {vr(V_ACC + 4 * q, 4)} offset:{q * 1024}")
    a("s_waitcnt lgkmcnt(0)")
    a("s_barrier")
    a("s_endpgm")
    a.label("L_out_fin")
    a(f"v_and_b32 v{V_T}, 31, v{V_LANE}")
    a(f"v_lshlrev_b32 v{V_T}, 10, v{V_T}")
    a(f"v_lshrrev_b32 v{V_T + 1}, 5, v{V_LANE}")
    a(f"v_lshlrev_b32 v{V_T + 1}, 3, v{V_T + 1}")
    a(f"v_add_u32 v{V_T}, v{V_T}, v{V_T + 1}")
    a(f"s_lshl_b32 s{S_T0}, s{S_TB}, 1")
    a(f"s_add_u32 s{S_T0}, s{S_T0}, s{S_TT}")
    a(f"s_lshl_b32 s{S_T0}, s{S_T0}, 15")
    a(f"s_lshl_b32 s{S_T1}, s{S_CB}, 7")
    a(f"s_add_u32 s{S_T0}, s{S_T0}, s{S_T1}")
    a("s_barrier")
    for q in range(8):
        a(f"ds_read_b128 {vr(V_OFR + 4 * q, 4)}, v{V_XA} offset:{16384 + q * 1024}")
    for q in range(8):
        a(f"ds_read_b128 {vr(V_OFR + 32 + 4 * q, 4)}, v{V_XA} offset:{32768 + q * 1024}")
    a("s_waitcnt lgkmcnt(8)")
    for i in range(32):
        a(f"v_add_f32 v{V_ACC + i}, v{V_ACC + i}, v{V_OFR + i}")
    for q in range(8):
        a(f"ds_read_b128 {vr(V_OFR + 4 * q, 4)}, v{V_XA} offset:{49152 + q * 1024}")
    for i in range(32):
        A = V_ACC + i
        a(f"v_cvt_pk_bf16_f32 v{A}, 0, v{A}")
        a(f"v_mul_f32 v{A}, v{V_G}, v{A}")
        a(f"v_cvt_pk_bf16_f32 v{A}, 0, v{A}")
    a("s_waitcnt lgkmcnt(0)")
    for i in range(32):
        B = V_OFR + 32 + i
        a(f"v_add_f32 v{B}, v{B}, v{V_OFR + i}")
        a(f"v_cvt_pk_bf16_f32 v{B}, 0, v{B}")
        a(f"v_mul_f32 v{B}, v{V_OMG}, v{B}")
        a(f"v_cvt_pk_bf16_f32 v{B}, 0, v{B}")
        a(f"v_add_f32 v{V_ACC + i}, v{V_ACC + i}, v{B}")
    for ct in range(2):
        for q in range(4):
            d = V_OFR + 2 * (4 * ct + q)
            b = V_ACC + 16 * ct + 4 * q
            a(f"v_cvt_pk_bf16_f32 v{d}, v{b}, v{b + 1}")
            a(f"v_cvt_pk_bf16_f32 v{d + 1}, v{b + 2}, v{b + 3}")
            a(f"buffer_store_dwordx2 {vr(d, 2)}, v{V_T}, s[{R_OUT}:{R_OUT + 3}], s{S_T0} offen offset:{64 * ct + 16 * q}")
    if STAMP:
        a("s_waitcnt vmcnt(0)")
    stamp(a, 3)
    stamp_store(a, 2, S_WAVE, R_WS, V_T)
    a.label("L_out_end")
    a("s_endpgm")
    return K, NV


def main():
    out = [x for x in sys.argv[1:] if not x.startswith("--")]
    a = Asm()
    a.raw("; @launch kernel=proj_kernel grid=(256,1,1) block=(320,1,1) lds=147456")
    a.raw("; @launch kernel=attn_kernel grid=(256,1,1) block=(1024,1,1) lds=139264")
    a.raw("; @launch kernel=out_kernel grid=(256,1,1) block=(512,1,1) lds=131072")
    a.raw('.amdgcn_target "amdgcn-amd-amdhsa--gfx950"')
    ks = [gen_proj(a), gen_attn(a), gen_out(a)]
    for k, nv in ks:
        kernel_desc(a, k, nv)
    path = out[0] if out else f"cdna_kernels/{NAME}.s"
    open(path, "w").write(a.text())
    print("wrote", path, len(a.lines), "lines")


if __name__ == "__main__":
    main()
```

```python
import sys, struct

NAME = "gated_mix__grouped_kv_mqa__mha_block__prompt"

QF_OFF = 0
KV_OFF = 4 << 20
OF_OFF = 9 << 20
G_OFF = 13 << 20
KB_OFF = 16 << 20
FL_OFF = 13 * (1 << 20) + 65536
WS_SIZE = 20 << 20
ST_OFF = 14 << 20

C_SCALE = 0.25 * 1.4426950408889634


def f32bits(x):
    return struct.unpack("<I", struct.pack("<f", x))[0]


class Asm:
    def __init__(self):
        self.lines = []

    def __call__(self, s):
        for ln in s.strip("\n").split("\n"):
            self.lines.append("    " + ln.strip())

    def label(self, s):
        self.lines.append(s + ":")

    def raw(self, s):
        self.lines.append(s)

    def text(self):
        return "\n".join(self.lines) + "\n"


def vr(b, n=1):
    return f"v{b}" if n == 1 else f"v[{b}:{b + n - 1}]"


def sr(b, n=1):
    return f"s{b}" if n == 1 else f"s[{b}:{b + n - 1}]"


def srd(a, d, base, nbytes):
    a(f"s_mov_b32 s{d}, s{base}")
    a(f"s_and_b32 s{d + 1}, s{base + 1}, 0xffff")
    a(f"s_mov_b32 s{d + 2}, {nbytes}")
    a(f"s_mov_b32 s{d + 3}, 0x00020000")


STAMP = "--stamp" in sys.argv
STP = " sc0 sc1"
for _x in sys.argv:
    if _x.startswith("--stp="):
        STP = " " + _x[6:].replace("+", " ")


def stamp(a, i):
    if STAMP:
        a(f"s_memtime s[{60 + 4 * i}:{61 + 4 * i}]")
        a(f"s_memrealtime s[{62 + 4 * i}:{63 + 4 * i}]")
        a(f"s_waitcnt lgkmcnt(0)")


def stamp_store(a, region, s_wave, r_ws, vt, nw=16):
    if not STAMP:
        return
    a(f"s_mul_i32 s80, s2, {nw}")
    a(f"s_add_u32 s80, s80, s{s_wave}")
    a(f"s_lshl_b32 s80, s80, 6")
    a(f"s_add_u32 s80, s80, {ST_OFF + region * 262144}")
    a(f"v_mov_b32 v{vt + 1}, 0")
    a(f"s_mov_b64 exec, 1")
    for i in range(16):
        a(f"v_mov_b32 v{vt}, s{60 + i}")
        a(f"buffer_store_dword v{vt}, v{vt + 1}, s[{r_ws}:{r_ws + 3}], s80 offen offset:{4 * i}")
    a(f"s_mov_b64 exec, -1")


def kernel_begin(a, name):
    a.raw(".text")
    a.raw(f".globl {name}")
    a.raw(".p2align 8")
    a.raw(f".type {name},@function")
    a.label(name)


def kernel_desc(a, name, nvgpr, nsgpr=102):
    acc = (nvgpr + 3) // 4 * 4
    a.raw('.section .rodata,"a"')
    a.raw(".p2align 6")
    a.raw(f".amdhsa_kernel {name}")
    a.raw(f"  .amdhsa_next_free_vgpr {nvgpr}")
    a.raw(f"  .amdhsa_next_free_sgpr {nsgpr}")
    a.raw(f"  .amdhsa_accum_offset {acc}")
    a.raw("  .amdhsa_group_segment_fixed_size 0")
    a.raw("  .amdhsa_kernarg_size 96")
    a.raw("  .amdhsa_user_sgpr_count 2")
    a.raw("  .amdhsa_user_sgpr_kernarg_segment_ptr 1")
    a.raw("  .amdhsa_system_sgpr_workgroup_id_x 1")
    a.raw(".end_amdhsa_kernel")


def gen_proj(a):
    K = "proj_kernel"
    kernel_begin(a, K)
    S_X, S_WQ, S_WK, S_WV, S_WQKV, S_WS = 4, 6, 8, 10, 12, 14
    R_X, R_W, R_WS = 16, 20, 24
    S_TB, S_CB, S_WAVE = 32, 33, 34
    S_XROW = 35
    S_WROW = 36
    S_PITCH = 37
    S_T0, S_T1, S_T2, S_T3 = 38, 39, 40, 41
    S_M0X, S_M0W = 42, 43
    S_P4 = 44
    S_P64 = 45
    S_DBASE, S_HSTR, S_TSTR = 46, 47, 48
    V_LANE = 1
    V_XE, V_XO, V_WOFF = 2, 3, 4
    V_XA = 5
    V_XB = 9
    V_WA, V_WB = 13, 14
    V_T = 15
    V_XF = 20
    V_WF = 52
    V_ACC = 60
    NV = 124
    SPW = 131072

    a(f"s_cmp_ge_u32 s2, 256")
    a(f"s_cbranch_scc1 L_proj_end")
    stamp(a, 0)
    a(f"s_load_dwordx8 s[4:11], s[0:1], 0")
    a(f"s_load_dwordx2 s[12:13], s[0:1], 48")
    a(f"s_load_dwordx2 s[14:15], s[0:1], 88")
    a(f"v_and_b32 v{V_LANE}, 63, v0")
    a(f"v_lshrrev_b32 v{V_T}, 6, v0")
    a(f"s_and_b32 s{S_T0}, s2, 1")
    a(f"s_lshl_b32 s{S_T0}, s{S_T0}, 3")
    a(f"s_lshr_b32 s{S_T1}, s2, 3")
    a(f"s_and_b32 s{S_T2}, s{S_T1}, 7")
    a(f"s_add_u32 s{S_TB}, s{S_T0}, s{S_T2}")
    a(f"s_and_b32 s{S_T0}, s2, 6")
    a(f"s_lshl_b32 s{S_T0}, s{S_T0}, 1")
    a(f"s_lshr_b32 s{S_T1}, s{S_T1}, 3")
    a(f"s_add_u32 s{S_CB}, s{S_T0}, s{S_T1}")
    a(f"v_readfirstlane_b32 s{S_WAVE}, v{V_T}")
    a(f"v_and_b32 v{V_T}, 31, v{V_LANE}")
    a(f"v_lshrrev_b32 v{V_T + 1}, 1, v{V_T}")
    a(f"v_and_b32 v{V_T + 1}, 7, v{V_T + 1}")
    a(f"v_lshrrev_b32 v{V_T + 2}, 5, v{V_LANE}")
    a(f"v_xor_b32 v{V_T + 1}, v{V_T + 1}, v{V_T + 2}")
    a(f"v_lshlrev_b32 v{V_T + 1}, 4, v{V_T + 1}")
    a(f"v_lshlrev_b32 v{V_T}, 7, v{V_T}")
    a(f"v_add_u32 v{V_XA}, v{V_T}, v{V_T + 1}")
    for s in range(1, 4):
        a(f"v_xor_b32 v{V_XA + s}, {32 * s}, v{V_XA}")
    for s in range(4):
        a(f"v_add_u32 v{V_XB + s}, 0x10000, v{V_XA + s}")
    a(f"s_cmp_eq_u32 s{S_WAVE}, 4")
    a(f"s_cbranch_scc1 L_proj_special")
    a(f"v_lshrrev_b32 v{V_T}, 3, v{V_LANE}")
    a(f"v_lshlrev_b32 v{V_T}, 10, v{V_T}")
    a(f"v_and_b32 v{V_T + 1}, 7, v{V_LANE}")
    a(f"v_lshrrev_b32 v{V_T + 2}, 4, v{V_LANE}")
    a(f"v_xor_b32 v{V_T + 1}, v{V_T + 1}, v{V_T + 2}")
    a(f"v_lshlrev_b32 v{V_T + 1}, 4, v{V_T + 1}")
    a(f"v_add_u32 v{V_XE}, v{V_T}, v{V_T + 1}")
    a(f"v_xor_b32 v{V_XO}, 64, v{V_XE}")
    a(f"s_waitcnt lgkmcnt(0)")
    srd(a, R_X, S_X, 2048 * 1024)
    srd(a, R_WS, S_WS, WS_SIZE)
    a(f"s_lshl_b32 s{S_T0}, s{S_TB}, 7")
    a(f"s_lshl_b32 s{S_T1}, s{S_WAVE}, 5")
    a(f"s_add_u32 s{S_T0}, s{S_T0}, s{S_T1}")
    a(f"s_lshl_b32 s{S_XROW}, s{S_T0}, 10")
    a(f"s_lshl_b32 s{S_M0X}, s{S_WAVE}, 12")
    a(f"s_add_u32 s{S_M0W}, s{S_M0X}, 16384")
    a(f"s_cmp_lt_u32 s{S_CB}, 4")
    a(f"s_cselect_b32 s{R_W}, s{S_WQ}, s{S_WQKV}")
    a(f"s_cselect_b32 s{S_T1}, s{S_WQ + 1}, s{S_WQKV + 1}")
    a(f"s_cselect_b32 s{S_PITCH}, 1, 3")
    a(f"s_cselect_b32 s{S_T0}, 0, 4")
    a(f"s_and_b32 s{R_W + 1}, s{S_T1}, 0xffff")
    a(f"s_lshl_b32 s{R_W + 2}, s{S_PITCH}, 19")
    a(f"s_mov_b32 s{R_W + 3}, 0x00020000")
    a(f"s_lshl_b32 s{S_PITCH}, s{S_PITCH}, 10")
    a(f"s_sub_u32 s{S_T0}, s{S_CB}, s{S_T0}")
    a(f"s_lshl_b32 s{S_T0}, s{S_T0}, 8")
    a(f"s_lshl_b32 s{S_P4}, s{S_PITCH}, 2")
    a(f"s_lshl_b32 s{S_P64}, s{S_PITCH}, 6")
    a(f"s_lshl_b32 s{S_T1}, s{S_WAVE}, 4")
    a(f"s_mul_i32 s{S_T1}, s{S_T1}, s{S_PITCH}")
    a(f"s_add_u32 s{S_WROW}, s{S_T0}, s{S_T1}")
    a(f"v_lshrrev_b32 v{V_T}, 4, v{V_LANE}")
    a(f"v_mul_lo_u32 v{V_T + 1}, v{V_T}, s{S_PITCH}")
    a(f"v_lshlrev_b32 v{V_T}, 2, v{V_T}")
    a(f"v_and_b32 v{V_T + 2}, 15, v{V_LANE}")
    a(f"v_xor_b32 v{V_T}, v{V_T}, v{V_T + 2}")
    a(f"v_lshlrev_b32 v{V_T}, 4, v{V_T}")
    a(f"v_add_u32 v{V_WOFF}, v{V_T}, v{V_T + 1}")

    def dma(kc):
        stage = kc & 3
        a(f"s_mul_i32 s{S_T1}, s{S_P64}, {kc}")
        a(f"s_add_u32 s{S_T1}, s{S_T1}, s{S_WROW}")
        for q in range(4):
            a(f"s_add_u32 m0, s{S_M0X}, {stage * 32768 + q * 1024}")
            a(f"s_add_u32 s{S_T0}, s{S_XROW}, {q * 8192 + kc * 128}")
            a(f"buffer_load_dwordx4 v{V_XE if q % 2 == 0 else V_XO}, s[{R_X}:{R_X + 3}], s{S_T0} offen lds")
            a(f"s_add_u32 m0, s{S_M0W}, {stage * 32768 + q * 1024}")
            a(f"s_nop 0")
            a(f"buffer_load_dwordx4 v{V_WOFF}, s[{R_W}:{R_W + 3}], s{S_T1} offen lds")
            if q < 3:
                a(f"s_add_u32 s{S_T1}, s{S_T1}, s{S_P4}")

    for kc in range(3):
        dma(kc)
    a(f"v_lshrrev_b32 v{V_T}, 5, v{V_LANE}")
    a(f"v_lshrrev_b32 v{V_T + 1}, 2, v{V_LANE}")
    a(f"v_and_b32 v{V_T + 1}, 3, v{V_T + 1}")
    a(f"v_lshl_add_u32 v{V_T}, v{V_T}, 3, v{V_T + 1}")
    a(f"v_lshlrev_b32 v{V_T}, 8, v{V_T}")
    a(f"v_xor_b32 v{V_T + 1}, s{S_WAVE}, v{V_T + 1}")
    a(f"v_lshlrev_b32 v{V_T + 1}, 6, v{V_T + 1}")
    a(f"v_add_u32 v{V_T}, v{V_T}, v{V_T + 1}")
    a(f"v_lshrrev_b32 v{V_T + 1}, 4, v{V_LANE}")
    a(f"v_and_b32 v{V_T + 1}, 1, v{V_T + 1}")
    a(f"v_lshlrev_b32 v{V_T + 1}, 5, v{V_T + 1}")
    a(f"v_add_u32 v{V_T}, v{V_T}, v{V_T + 1}")
    a(f"v_and_b32 v{V_T + 1}, 3, v{V_LANE}")
    a(f"v_lshlrev_b32 v{V_T + 1}, 3, v{V_T + 1}")
    a(f"v_add_u32 v{V_WA}, v{V_T}, v{V_T + 1}")
    a(f"v_add_u32 v{V_WB}, 0x10000, v{V_WA}")
    for i in range(64):
        a(f"v_mov_b32 v{V_ACC + i}, 0")

    def reads(kc, s, buf, special_tt=None):
        stage = kc & 3
        xa = (V_XA if stage < 2 else V_XB) + s
        sb = (stage & 1) * 32768
        if special_tt is None:
            wa = V_WA if stage < 2 else V_WB
            for half in range(2):
                a(f"ds_read_b64_tr_b16 {vr(V_WF + 4 * buf + 2 * half, 2)}, v{wa} offset:{sb + 16384 + (16 * s + 4 * half) * 256}")
            for tt in range(4):
                a(f"ds_read_b128 {vr(V_XF + 16 * buf + 4 * tt, 4)}, v{xa} offset:{sb + tt * 4096}")
        else:
            for half in range(2):
                a(f"ds_read_b64_tr_b16 {vr(V_WF + 4 * buf + 2 * half, 2)}, v{V_WA} offset:{(kc * 64 + 16 * s + 4 * half) * 32}")
            a(f"ds_read_b128 {vr(V_XF + 16 * buf, 4)}, v{xa} offset:{sb}")

    def mfmas(buf, typ, ntt):
        for tt in range(ntt):
            xf = vr(V_XF + 16 * buf + 4 * tt, 4)
            wf = vr(V_WF + 4 * buf, 4)
            acc = vr(V_ACC + 16 * tt, 16)
            if typ == "T":
                a(f"v_mfma_f32_32x32x16_bf16 {acc}, {wf}, {xf}, {acc}")
            else:
                a(f"v_mfma_f32_32x32x16_bf16 {acc}, {xf}, {wf}, {acc}")

    def kloop(typ, special):
        nrd = 3 if special else 6
        sp = 0 if special else None

        def chunk_sync(kc):
            if special:
                if kc == 0:
                    a("s_waitcnt vmcnt(0)")
            else:
                a(f"s_waitcnt vmcnt({8 * min(2, 7 - kc)})")
            a("s_barrier")
            if kc == 0 and not special:
                stamp(a, 1)
            if not special and kc + 3 < 8:
                dma(kc + 3)
        chunk_sync(0)
        reads(0, 0, 0, sp)
        for ks in range(32):
            kc, s = ks >> 2, ks & 3
            if ks < 31:
                if s == 3:
                    a("s_waitcnt lgkmcnt(0)")
                    chunk_sync(kc + 1)
                reads((ks + 1) >> 2, (ks + 1) & 3, (ks + 1) & 1, sp)
                if s != 3:
                    a(f"s_waitcnt lgkmcnt({nrd})")
            else:
                a("s_waitcnt lgkmcnt(0)")
            mfmas(ks & 1, typ, 1 if special else 4)

    def pack_store(tt, half, voff, soff, imm=0):
        b = V_ACC + 16 * tt + 8 * half
        d = V_XF + 4 * ((2 * tt + half) % 8)
        for i in range(4):
            a(f"v_cvt_pk_bf16_f32 v{d + i}, v{b + 2 * i}, v{b + 2 * i + 1}")
        a(f"buffer_store_dwordx4 {vr(d, 4)}, v{voff}, s[{R_WS}:{R_WS + 3}], s{soff} offen offset:{imm}{STP}")

    def pack_store_k(tt, half, voff, soff_kv, soff_kb, vmax):
        b = V_ACC + 16 * tt + 8 * half
        d = V_XF + 8 * ((2 * tt + half) % 4)
        for i in range(4):
            a(f"v_cvt_pk_bf16_f32 v{d + i}, v{b + 2 * i}, v{b + 2 * i + 1}")
        a(f"buffer_store_dwordx4 {vr(d, 4)}, v{voff}, s[{R_WS}:{R_WS + 3}], s{soff_kb} offen{STP}")
        for i in range(4):
            a(f"v_lshlrev_b32 v{b + 2 * i}, 16, v{d + i}")
            a(f"v_and_b32 v{b + 2 * i + 1}, 0xffff0000, v{d + i}")
            a(f"v_max3_f32 v{vmax}, abs(v{b + 2 * i}), abs(v{b + 2 * i + 1}), v{vmax}")
            a(f"v_cvt_pkrtz_f16_f32 v{d + 4 + i}, v{b + 2 * i}, v{b + 2 * i + 1}")
        a(f"buffer_store_dwordx4 {vr(d + 4, 4)}, v{voff}, s[{R_WS}:{R_WS + 3}], s{soff_kv} offen{STP}")

    def flag_store(vmax, s_addr, nl):
        a(f"v_mov_b32 v{V_T + 1}, 0x477fe000")
        a(f"v_cmp_nle_f32 vcc, v{vmax}, v{V_T + 1}")
        a(f"s_cmp_lg_u64 vcc, 0")
        a(f"s_cselect_b32 s{S_T3}, 1, 0")
        a(f"v_mov_b32 v{V_T + 1}, s{S_T3}")
        a(f"v_lshlrev_b32 v{V_T + 2}, 2, v{V_LANE}")
        a(f"s_mov_b64 exec, {(1 << nl) - 1}")
        a(f"buffer_store_dword v{V_T + 1}, v{V_T + 2}, s[{R_WS}:{R_WS + 3}], s{s_addr} offen")
        a(f"s_mov_b64 exec, -1")

    a(f"s_cmp_ge_u32 s{S_CB}, 12")
    a(f"s_cbranch_scc1 L_proj_N")
    kloop("T", False)
    stamp(a, 2)
    a(f"s_lshl_b32 s{S_T0}, s{S_CB}, 2")
    a(f"s_add_u32 s{S_T0}, s{S_T0}, s{S_WAVE}")
    a(f"v_lshlrev_b32 v{V_T}, 4, v{V_LANE}")
    a(f"s_cmp_ge_u32 s{S_T0}, 32")
    a(f"s_cbranch_scc1 L_proj_TK")
    a(f"s_lshl_b32 s{S_DBASE}, s{S_T0}, 17")
    a(f"s_lshl_b32 s{S_T0}, s{S_TB}, 12")
    a(f"s_add_u32 s{S_DBASE}, s{S_DBASE}, s{S_T0}")
    a("s_nop 7")
    for tt in range(4):
        a(f"s_add_u32 s{S_T0}, s{S_DBASE}, 65536")
        pack_store(tt, 0, V_T, S_DBASE)
        pack_store(tt, 1, V_T, S_T0)
        if tt < 3:
            a(f"s_add_u32 s{S_DBASE}, s{S_DBASE}, 1024")
    if STAMP:
        a("s_waitcnt vmcnt(0)")
    stamp(a, 3)
    stamp_store(a, 1, S_WAVE, R_WS, V_T)
    a("s_endpgm")
    a.label("L_proj_TK")
    a(f"s_sub_u32 s{S_T0}, s{S_T0}, 32")
    a(f"s_lshl_b32 s{S_T1}, s{S_T0}, 8")
    a(f"s_lshl_b32 s{S_T2}, s{S_TB}, 4")
    a(f"s_add_u32 s{S_HSTR}, s{S_T1}, s{S_T2}")
    a(f"s_add_u32 s{S_HSTR}, s{S_HSTR}, {FL_OFF}")
    a(f"s_lshl_b32 s{S_DBASE}, s{S_T0}, 18")
    a(f"s_lshl_b32 s{S_T1}, s{S_TB}, 13")
    a(f"s_add_u32 s{S_DBASE}, s{S_DBASE}, s{S_T1}")
    a(f"s_lshr_b32 s{S_TSTR}, s{S_DBASE}, 1")
    a(f"s_add_u32 s{S_DBASE}, s{S_DBASE}, {KV_OFF + 131072}")
    a(f"s_add_u32 s{S_TSTR}, s{S_TSTR}, {KB_OFF + 65536}")
    a(f"v_mov_b32 v{V_T + 3}, 0")
    a("s_nop 3")
    for tt in range(4):
        a(f"s_add_u32 s{S_T0}, s{S_DBASE}, 131072")
        a(f"s_add_u32 s{S_T1}, s{S_TSTR}, 65536")
        pack_store_k(tt, 0, V_T, S_DBASE, S_TSTR, V_T + 3)
        pack_store_k(tt, 1, V_T, S_T0, S_T1, V_T + 3)
        if tt < 3:
            a(f"s_add_u32 s{S_DBASE}, s{S_DBASE}, 2048")
            a(f"s_add_u32 s{S_TSTR}, s{S_TSTR}, 1024")
    flag_store(V_T + 3, S_HSTR, 4)
    if STAMP:
        a("s_waitcnt vmcnt(0)")
    stamp(a, 3)
    stamp_store(a, 1, S_WAVE, R_WS, V_T)
    a("s_endpgm")

    a.label("L_proj_N")
    kloop("N", False)
    stamp(a, 2)
    a(f"s_sub_u32 s{S_T0}, s{S_CB}, 12")
    a(f"s_lshl_b32 s{S_T0}, s{S_T0}, 2")
    a(f"s_add_u32 s{S_T0}, s{S_T0}, s{S_WAVE}")
    a(f"s_lshl_b32 s{S_T0}, s{S_T0}, 18")
    a(f"s_add_u32 s{S_DBASE}, s{S_T0}, {KV_OFF + 131072 + 1024}")
    a(f"s_lshl_b32 s{S_T0}, s{S_TB}, 13")
    a(f"s_add_u32 s{S_DBASE}, s{S_DBASE}, s{S_T0}")
    a(f"v_lshrrev_b32 v{V_T}, 4, v{V_LANE}")
    a(f"v_and_b32 v{V_T}, 1, v{V_T}")
    a(f"v_lshlrev_b32 v{V_T}, 17, v{V_T}")
    a(f"v_lshrrev_b32 v{V_T + 1}, 5, v{V_LANE}")
    a(f"v_lshlrev_b32 v{V_T + 1}, 9, v{V_T + 1}")
    a(f"v_add_u32 v{V_T}, v{V_T}, v{V_T + 1}")
    a(f"v_and_b32 v{V_T + 1}, 15, v{V_LANE}")
    a(f"v_lshlrev_b32 v{V_T + 1}, 4, v{V_T + 1}")
    a(f"v_add_u32 v{V_T}, v{V_T}, v{V_T + 1}")
    a("s_nop 3")
    for tt in range(4):
        pack_store(tt, 0, V_T, S_DBASE, 0)
        pack_store(tt, 1, V_T, S_DBASE, 256)
        if tt < 3:
            a(f"s_add_u32 s{S_DBASE}, s{S_DBASE}, 2048")
    if STAMP:
        a("s_waitcnt vmcnt(0)")
    stamp(a, 3)
    stamp_store(a, 1, S_WAVE, R_WS, V_T)
    a("s_endpgm")

    a.label("L_proj_special")
    a(f"s_cmp_ge_u32 s{S_CB}, 8")
    a(f"s_cbranch_scc1 L_proj_end")
    a(f"s_waitcnt lgkmcnt(0)")
    srd(a, R_WS, S_WS, WS_SIZE)
    a(f"s_cmp_lt_u32 s{S_CB}, 4")
    a(f"s_cselect_b32 s{R_W}, s{S_WK}, s{S_WV}")
    a(f"s_cselect_b32 s{S_T1}, s{S_WK + 1}, s{S_WV + 1}")
    a(f"s_and_b32 s{R_W + 1}, s{S_T1}, 0xffff")
    a(f"s_mov_b32 s{R_W + 2}, 16384")
    a(f"s_mov_b32 s{R_W + 3}, 0x00020000")
    a(f"v_lshlrev_b32 v{V_T}, 4, v{V_LANE}")
    for i in range(16):
        a(f"s_mov_b32 m0, {SPW + i * 1024}")
        a(f"s_mov_b32 s{S_T0}, {i * 1024}")
        a(f"buffer_load_dwordx4 v{V_T}, s[{R_W}:{R_W + 3}], s{S_T0} offen lds")
    a(f"s_and_b32 s{S_T0}, s{S_CB}, 3")
    a(f"s_lshl_b32 s{S_T1}, s{S_T0}, 12")
    for s in range(4):
        a(f"v_add_u32 v{V_XA + s}, s{S_T1}, v{V_XA + s}")
        a(f"v_add_u32 v{V_XB + s}, s{S_T1}, v{V_XB + s}")
    a(f"v_lshrrev_b32 v{V_T}, 5, v{V_LANE}")
    a(f"v_lshrrev_b32 v{V_T + 1}, 2, v{V_LANE}")
    a(f"v_and_b32 v{V_T + 1}, 3, v{V_T + 1}")
    a(f"v_lshl_add_u32 v{V_T}, v{V_T}, 3, v{V_T + 1}")
    a(f"v_lshlrev_b32 v{V_T}, 5, v{V_T}")
    a(f"v_and_b32 v{V_T + 1}, 3, v{V_LANE}")
    a(f"v_lshlrev_b32 v{V_T + 1}, 3, v{V_T + 1}")
    a(f"v_add_u32 v{V_T}, v{V_T}, v{V_T + 1}")
    a(f"v_add_u32 v{V_WA}, {SPW}, v{V_T}")
    for i in range(16):
        a(f"v_mov_b32 v{V_ACC + i}, 0")
    a(f"s_lshl_b32 s{S_T1}, s{S_TB}, 2")
    a(f"s_add_u32 s{S_T0}, s{S_T0}, s{S_T1}")
    a(f"s_lshl_b32 s{S_DBASE}, s{S_T0}, 11")
    a(f"s_add_u32 s{S_DBASE}, s{S_DBASE}, {KV_OFF}")
    a(f"s_cmp_ge_u32 s{S_CB}, 4")
    a(f"s_cbranch_scc1 L_proj_spN")
    kloop("T", True)
    a(f"v_lshlrev_b32 v{V_T}, 4, v{V_LANE}")
    a(f"s_lshl_b32 s{S_TSTR}, s{S_T0}, 10")
    a(f"s_add_u32 s{S_TSTR}, s{S_TSTR}, {KB_OFF}")
    a(f"s_lshl_b32 s{S_HSTR}, s{S_T0}, 2")
    a(f"s_add_u32 s{S_HSTR}, s{S_HSTR}, {FL_OFF + 16 * 256}")
    a(f"v_mov_b32 v{V_T + 3}, 0")
    a("s_nop 15")
    pack_store_k(0, 0, V_T, S_DBASE, S_TSTR, V_T + 3)
    flag_store(V_T + 3, S_HSTR, 1)
    a("s_endpgm")
    a.label("L_proj_spN")
    kloop("N", True)
    a(f"v_lshrrev_b32 v{V_T + 1}, 5, v{V_LANE}")
    a(f"v_lshlrev_b32 v{V_T + 1}, 9, v{V_T + 1}")
    a(f"v_and_b32 v{V_T}, 15, v{V_LANE}")
    a(f"v_lshlrev_b32 v{V_T}, 4, v{V_T}")
    a(f"v_add_u32 v{V_T}, v{V_T}, v{V_T + 1}")
    a(f"v_and_b32 v{V_T + 1}, 16, v{V_LANE}")
    a(f"v_mov_b32 v{V_T + 2}, 0x40000000")
    a(f"v_cmp_eq_u32 vcc, 0, v{V_T + 1}")
    a(f"s_nop 7")
    a(f"v_cndmask_b32 v{V_T}, v{V_T + 2}, v{V_T}, vcc")
    a(f"s_nop 3")
    pack_store(0, 0, V_T, S_DBASE, 1024)
    pack_store(0, 1, V_T, S_DBASE, 1024 + 256)
    a.label("L_proj_end")
    a("s_endpgm")
    return K, NV


def gen_attn(a, bias=24.0):
    K = "attn_kernel"
    kernel_begin(a, K)
    S_X, S_GW, S_WS = 4, 6, 8
    R_WS, R_X, R_GW = 12, 16, 20
    S_WAVE, S_HEAD, S_QT, S_KV = 24, 25, 26, 27
    S_T0, S_T1, S_T2 = 28, 29, 30
    S_KVH = 31
    S_MASK = 32
    S_IT = 34
    S_G, S_OMG = 35, 36
    S_SLOW = 38
    S_QOFF = 40
    S_WOA, S_WOB = 42, 44
    R_WO = 48
    V_LANE = 1
    V_L16 = 2
    V_A = 3
    V_T = 4
    V_QH, V_QL = 12, 16
    V_K = 20
    V_V = 28
    V_P = 36
    V_M = 44
    V_C = 45
    V_NM = 48
    V_S = 64
    V_O = 96
    NV = 112
    ABL = [x[6:] for x in sys.argv if x.startswith("--abl=")]

    a(f"s_cmp_ge_u32 s2, 256")
    a(f"s_cbranch_scc1 L_attn_end")
    stamp(a, 0)
    a(f"s_load_dwordx2 s[{S_WS}:{S_WS + 1}], s[0:1], 88")
    a(f"s_load_dwordx2 s[{S_X}:{S_X + 1}], s[0:1], 0")
    a(f"s_load_dwordx2 s[{S_GW}:{S_GW + 1}], s[0:1], 64")
    a(f"s_load_dwordx2 s[{S_WOA}:{S_WOA + 1}], s[0:1], 32")
    a(f"s_load_dwordx2 s[{S_WOB}:{S_WOB + 1}], s[0:1], 56")
    a(f"v_and_b32 v{V_LANE}, 63, v0")
    a(f"v_lshrrev_b32 v{V_T}, 6, v0")
    a(f"v_lshlrev_b32 v{V_L16}, 4, v{V_LANE}")
    a(f"v_readfirstlane_b32 s{S_WAVE}, v{V_T}")
    a(f"s_and_b32 s{S_T0}, s2, 7")
    a(f"s_lshr_b32 s{S_T1}, s2, 3")
    a(f"s_and_b32 s{S_T2}, s{S_T1}, 3")
    a(f"s_lshr_b32 s{S_T1}, s{S_T1}, 2")
    a(f"s_lshl_b32 s{S_T1}, s{S_T1}, 3")
    a(f"s_add_u32 s{S_HEAD}, s{S_T1}, s{S_T0}")
    a(f"s_lshl_b32 s{S_QT}, s{S_T2}, 4")
    a(f"s_add_u32 s{S_QT}, s{S_QT}, s{S_WAVE}")
    a(f"s_sub_u32 s{S_T0}, s{S_HEAD}, 31")
    a(f"s_cmp_lt_u32 s{S_HEAD}, 32")
    a(f"s_cselect_b32 s{S_KVH}, 0, s{S_T0}")
    a(f"s_lshl_b32 s{S_KV}, s{S_KVH}, 17")
    a(f"s_add_u32 s{S_KV}, s{S_KV}, {KV_OFF}")
    a(f"s_mov_b32 s{S_MASK}, 0x0000ffff")
    a(f"s_mov_b32 s{S_MASK + 1}, 0x0000ffff")
    a(f"s_lshl_b32 s{S_T0}, s{S_HEAD}, 16")
    a(f"s_lshl_b32 s{S_T1}, s{S_QT}, 10")
    a(f"s_add_u32 s{S_QOFF}, s{S_T0}, s{S_T1}")
    a(f"s_lshl_b32 s{S_T0}, s{S_WAVE}, 10")
    a(f"s_add_u32 s{S_T1}, s{S_T0}, s{S_KV}")
    a(f"s_waitcnt lgkmcnt(0)")
    srd(a, R_WS, S_WS, WS_SIZE)
    a(f"s_mov_b32 m0, s{S_T0}")
    a(f"s_nop 0")
    a(f"buffer_load_dwordx4 v{V_L16}, s[{R_WS}:{R_WS + 3}], s{S_T1} offen lds")
    a(f"buffer_load_dwordx4 {vr(V_S, 4)}, v{V_L16}, s[{R_WS}:{R_WS + 3}], s{S_QOFF} offen")
    a(f"s_sub_u32 s{S_T2}, s{S_KVH}, 1")
    a(f"s_lshr_b32 s{S_T2}, s{S_T2}, 1")
    a(f"s_cmp_eq_u32 s{S_KVH}, 0")
    a(f"s_cselect_b32 s{S_T2}, 16, s{S_T2}")
    a(f"s_lshl_b32 s{S_T2}, s{S_T2}, 8")
    a(f"s_add_u32 s{S_T2}, s{S_T2}, {FL_OFF}")
    a(f"v_lshlrev_b32 v{V_T}, 2, v{V_LANE}")
    a(f"buffer_load_dword v{V_S + 12}, v{V_T}, s[{R_WS}:{R_WS + 3}], s{S_T2} offen")
    srd(a, R_X, S_X, 2048 * 1024)
    srd(a, R_GW, S_GW, 1024)
    a(f"s_and_b32 s{S_T2}, s{S_WAVE}, 7")
    a(f"s_lshl_b32 s{S_IT}, s2, 3")
    a(f"s_add_u32 s{S_T2}, s{S_T2}, s{S_IT}")
    a(f"s_lshl_b32 s{S_T2}, s{S_T2}, 10")
    a(f"buffer_load_dwordx4 {vr(V_S + 4, 4)}, v{V_L16}, s[{R_X}:{R_X + 3}], s{S_T2} offen")
    a(f"buffer_load_dwordx4 {vr(V_S + 8, 4)}, v{V_L16}, s[{R_GW}:{R_GW + 3}], 0 offen")
    for i in range(1, 8):
        a(f"s_add_u32 m0, s{S_T0}, {i * 16384}")
        a(f"s_add_u32 s{S_T2}, s{S_T1}, {i * 16384}")
        a(f"buffer_load_dwordx4 v{V_L16}, s[{R_WS}:{R_WS + 3}], s{S_T2} offen lds")
    a(f"v_and_b32 v{V_T}, 27, v{V_LANE}")
    a(f"v_cmp_eq_u32 vcc, 16, v{V_T}")
    a(f"v_mov_b32 v{V_T + 1}, 0x3f803f80")
    a(f"s_nop 1")
    for i in range(8):
        a(f"v_cndmask_b32 v{V_V + i}, 0, v{V_T + 1}, vcc")
    for i in range(16):
        a(f"v_mov_b32 v{V_O + i}, 0")
    a(f"v_mov_b32 v{V_C}, {f32bits(C_SCALE):#x}")
    a(f"v_mov_b32 v{V_A}, v{V_L16}")
    a(f"s_waitcnt vmcnt(9)")
    a(f"v_mov_b32 v{V_T + 4}, 0")
    for i in range(4):
        q = V_S + i
        a(f"v_lshlrev_b32 v{V_T}, 16, v{q}")
        a(f"v_and_b32 v{V_T + 1}, 0xffff0000, v{q}")
        a(f"v_mul_f32 v{V_T}, v{V_C}, v{V_T}")
        a(f"v_mul_f32 v{V_T + 1}, v{V_C}, v{V_T + 1}")
        a(f"v_max3_f32 v{V_T + 4}, abs(v{V_T}), abs(v{V_T + 1}), v{V_T + 4}")
        a(f"v_cvt_f16_f32 v{V_T}, v{V_T}")
        a(f"v_cvt_f16_f32 v{V_T + 1}, v{V_T + 1}")
        a(f"v_pack_b32_f16 v{V_QH + i}, v{V_T}, v{V_T + 1}")
    a(f"v_mov_b32 v{V_T}, 0x477fe000")
    a(f"v_cmp_nle_f32 vcc, v{V_T + 4}, v{V_T}")
    a(f"s_mov_b64 s[{S_SLOW}:{S_SLOW + 1}], vcc")
    a(f"v_cmp_ne_u32 vcc, 0, v{V_S + 12}")
    a(f"s_or_b64 s[{S_SLOW}:{S_SLOW + 1}], s[{S_SLOW}:{S_SLOW + 1}], vcc")
    a(f"s_barrier")
    stamp(a, 1)

    def mf(d, A, B, c, ty="bf16"):
        a(f"v_mfma_f32_32x32x16_{ty} {vr(d, 16)}, {vr(A, 4)}, {vr(B, 4)}, {c}")

    def vread(dst, off):
        a(f"s_mov_b64 exec, s[{S_MASK}:{S_MASK + 1}]")
        a(f"ds_read_b128 {vr(dst, 4)}, v{V_A} offset:{off}")
        a(f"s_mov_b64 exec, -1")

    def tile_max(S, dst, tmp):
        a(f"v_max3_f32 v{dst}, v{S}, v{S + 1}, v{S + 2}")
        for i in range(3, 15, 2):
            a(f"v_max3_f32 v{dst}, v{dst}, v{S + i}, v{S + i + 1}")
        a(f"v_max_f32 v{dst}, v{dst}, v{S + 15}")
        a(f"v_mov_b32 v{tmp}, v{dst}")
        a(f"s_nop 1")
        a(f"v_permlane32_swap_b32 v{dst}, v{tmp}")
        a(f"s_nop 1")
        a(f"v_max_f32 v{dst}, v{dst}, v{tmp}")

    a(f"ds_read_b128 {vr(V_K, 4)}, v{V_A} offset:0")
    a(f"ds_read_b128 {vr(V_K + 4, 4)}, v{V_A} offset:2048")
    vread(V_V, 1024)
    a(f"s_waitcnt lgkmcnt(2)")
    mf(V_NM, V_K, V_QH, "0", "f16")
    a(f"s_waitcnt vmcnt(7)")
    a(f"v_mov_b32 v{V_T + 4}, 0")
    for i in range(4):
        x, g = V_S + 4 + i, V_S + 8 + i
        a(f"v_lshlrev_b32 v{V_T}, 16, v{x}")
        a(f"v_and_b32 v{V_T + 1}, 0xffff0000, v{x}")
        a(f"v_lshlrev_b32 v{V_T + 2}, 16, v{g}")
        a(f"v_and_b32 v{V_T + 3}, 0xffff0000, v{g}")
        a(f"v_mul_f32 v{V_T}, v{V_T}, v{V_T + 2}")
        a(f"v_mul_f32 v{V_T + 1}, v{V_T + 1}, v{V_T + 3}")
        a(f"v_cvt_pk_bf16_f32 v{V_T}, v{V_T}, v{V_T + 1}")
        a(f"v_lshlrev_b32 v{V_T + 1}, 16, v{V_T}")
        a(f"v_and_b32 v{V_T}, 0xffff0000, v{V_T}")
        a(f"v_add_f32 v{V_T + 4}, v{V_T + 4}, v{V_T + 1}")
        a(f"v_add_f32 v{V_T + 4}, v{V_T + 4}, v{V_T}")
    for (ctrl) in ("quad_perm:[1,0,3,2]", "quad_perm:[2,3,0,1]", "row_half_mirror", "row_mirror"):
        a(f"s_nop 1")
        a(f"v_add_f32_dpp v{V_T}, v{V_T + 4}, v{V_T + 4} {ctrl} row_mask:0xf bank_mask:0xf")
        a(f"v_mov_b32 v{V_T + 4}, v{V_T}")
    a(f"s_nop 1")
    a(f"v_permlane16_swap_b32 v{V_T}, v{V_T + 4}")
    a(f"s_nop 1")
    a(f"v_add_f32 v{V_T + 4}, v{V_T}, v{V_T + 4}")
    a(f"v_mov_b32 v{V_T}, v{V_T + 4}")
    a(f"s_nop 1")
    a(f"v_permlane32_swap_b32 v{V_T}, v{V_T + 4}")
    a(f"s_nop 1")
    a(f"v_add_f32 v{V_T}, v{V_T}, v{V_T + 4}")
    a(f"v_cvt_pk_bf16_f32 v{V_T}, 0, v{V_T}")
    a(f"v_mul_f32 v{V_T}, {f32bits(-1.4426950408889634):#x}, v{V_T}")
    a(f"v_exp_f32 v{V_T}, v{V_T}")
    a(f"s_nop 0")
    a(f"v_add_f32 v{V_T}, 1.0, v{V_T}")
    a(f"v_rcp_f32 v{V_T}, v{V_T}")
    a(f"s_nop 0")
    a(f"v_cvt_pk_bf16_f32 v{V_T}, 0, v{V_T}")
    a(f"v_sub_f32 v{V_T + 1}, 1.0, v{V_T}")
    a(f"v_cvt_pk_bf16_f32 v{V_T + 1}, 0, v{V_T + 1}")
    a(f"s_nop 0")
    a(f"v_readfirstlane_b32 s{S_G}, v{V_T}")
    a(f"v_readfirstlane_b32 s{S_OMG}, v{V_T + 1}")
    S0 = V_S
    tile_max(V_NM, V_T, V_T + 1)
    a(f"v_sub_f32 v{V_T}, {f32bits(-bias):#x}, v{V_T}")
    for i in range(16):
        a(f"v_add_f32 v{S0 + i}, v{V_NM + i}, v{V_T}")
    for i in range(16):
        a(f"v_mov_b32 v{V_NM + i}, v{V_T}")
    for i in range(4, 8):
        a(f"v_mov_b32 v{V_P + i}, 0")
    a(f"s_mov_b32 s{S_IT}, 0")

    def ex(A, i):
        if "exp" not in ABL:
            a(f"v_exp_f32 v{A + i}, v{A + i}")

    def cv(A, i):
        if "cvt" not in ABL:
            a(f"v_cvt_pk_bf16_f32 v{V_P + i}, v{A + 2 * i}, v{A + 2 * i + 1}")

    def sub_iter(par):
        A = V_S + 16 * par
        B = V_S + 16 * (par ^ 1)
        Kn = V_K + 4 * (par ^ 1)
        Kp = V_K + 4 * par
        base = 2048 * par
        a(f"s_waitcnt lgkmcnt(1)")
        mf(B, Kn, V_QH, vr(V_NM, 16), "f16")
        a(f"ds_read_b128 {vr(Kp, 4)}, v{V_A} offset:{base + 4096}")
        for i in range(0, 5):
            ex(A, i)
        mf(V_O, V_V + 4, V_P + 4, vr(V_O, 16))
        vread(V_V + 4, base + 1024 + 256)
        for i in range(5, 8):
            ex(A, i)
        for i in range(0, 4):
            cv(A, i)
        for i in range(8, 10):
            ex(A, i)
        a(f"s_waitcnt lgkmcnt(2)")
        mf(V_O, V_V, V_P, vr(V_O, 16))
        vread(V_V, base + 2048 + 1024)
        for i in range(10, 16):
            ex(A, i)
        for i in range(4, 8):
            cv(A, i)

    ladder = [(0, 3), (40, 2), (56, 1), (60, 0)]
    for x in sys.argv:
        if x.startswith("--ladder="):
            bs = [int(v) for v in x.split("=")[1].split(",")]
            ladder = [(0, 3)] + [(b, 2 - i) for i, b in enumerate(bs)]
    a("s_setprio 3")
    a.label("L_attn_loop")
    for u in range(4):
        for (t0, pr) in ladder:
            if t0 > 0 and (t0 % 8) // 2 == u:
                a(f"s_cmp_eq_u32 s{S_IT}, {t0 // 8}")
                a(f"s_cbranch_scc0 L_attn_np{t0}")
                a(f"s_setprio {pr}")
                a.label(f"L_attn_np{t0}")
        if u == 2:
            a(f"s_cmp_eq_u32 s{S_IT}, 0")
            a(f"s_cbranch_scc0 L_attn_nobar")
            a(f"s_waitcnt vmcnt(0)")
            a(f"s_barrier")
            if "--nopf" not in sys.argv:
                a(f"s_lshr_b32 s{S_T0}, s2, 3")
                a(f"s_lshl_b32 s{S_T0}, s{S_T0}, 4")
                a(f"s_add_u32 s{S_T0}, s{S_T0}, s{S_WAVE}")
                a(f"s_cmp_lt_u32 s{S_T0}, 256")
                a(f"s_cselect_b32 s{R_WO}, s{S_WOA}, s{S_WOB}")
                a(f"s_cselect_b32 s{S_T1}, s{S_WOA + 1}, s{S_WOB + 1}")
                a(f"s_and_b32 s{R_WO + 1}, s{S_T1}, 0xffff")
                a(f"s_mov_b32 s{R_WO + 2}, {512 * 1024}")
                a(f"s_mov_b32 s{R_WO + 3}, 0x00020000")
                a(f"s_and_b32 s{S_T0}, s{S_T0}, 255")
                a(f"s_lshl_b32 s{S_T0}, s{S_T0}, 11")
                a(f"buffer_load_dwordx4 {vr(V_QL, 4)}, v{V_L16}, s[{R_WO}:{R_WO + 3}], s{S_T0} offen")
                a(f"buffer_load_dwordx4 {vr(V_QL, 4)}, v{V_L16}, s[{R_WO}:{R_WO + 3}], s{S_T0} offen offset:1024")
            a.label("L_attn_nobar")
        sub_iter(0)
        sub_iter(1)
        a(f"v_add_u32 v{V_A}, 0x1000, v{V_A}")
    a(f"s_add_u32 s{S_IT}, s{S_IT}, 1")
    a(f"s_cmp_lt_u32 s{S_IT}, 8")
    a(f"s_cbranch_scc1 L_attn_loop")
    a(f"s_waitcnt lgkmcnt(0)")
    stamp(a, 2)
    mf(V_O, V_V + 4, V_P + 4, vr(V_O, 16))
    a("s_nop 15")
    a("s_nop 3")
    a(f"v_mov_b32 v{V_T}, {f32bits(2.0 ** 120):#x}")
    a(f"v_cmp_nlt_f32 vcc, v{V_O + 8}, v{V_T}")
    a(f"s_or_b64 s[{S_SLOW}:{S_SLOW + 1}], s[{S_SLOW}:{S_SLOW + 1}], vcc")
    for i in range(8):
        a(f"v_cmp_nlt_f32 vcc, abs(v{V_O + i}), v{V_T}")
        a(f"s_or_b64 s[{S_SLOW}:{S_SLOW + 1}], s[{S_SLOW}:{S_SLOW + 1}], vcc")
    if "--forceslow" in sys.argv:
        a(f"s_branch L_attn_slow")
    a(f"s_cmp_eq_u64 s[{S_SLOW}:{S_SLOW + 1}], 0")
    a(f"s_cbranch_scc0 L_attn_slow")
    a.label("L_attn_epi")
    a(f"v_rcp_f32 v{V_T}, v{V_O + 8}")
    a("s_nop 0")
    for i in range(8):
        a(f"v_mul_f32 v{V_O + i}, v{V_O + i}, v{V_T}")
    for i in range(4):
        a(f"v_cvt_pk_bf16_f32 v{V_P + i}, v{V_O + 2 * i}, v{V_O + 2 * i + 1}")
    a(f"s_add_u32 s{S_T0}, s{S_QOFF}, {OF_OFF}")
    a(f"buffer_store_dwordx4 {vr(V_P, 4)}, v{V_L16}, s[{R_WS}:{R_WS + 3}], s{S_T0} offen{STP}")
    stamp(a, 3)
    stamp_store(a, 0, S_WAVE, R_WS, V_T)
    a(f"s_cmp_ge_u32 s{S_WAVE}, 8")
    a(f"s_cbranch_scc1 L_attn_end")
    a(f"s_lshl_b32 s{S_T1}, s2, 3")
    a(f"s_add_u32 s{S_T0}, s{S_WAVE}, s{S_T1}")
    a(f"s_lshl_b32 s{S_T0}, s{S_T0}, 2")
    a(f"s_add_u32 s{S_T0}, s{S_T0}, {G_OFF}")
    a(f"v_mov_b32 v{V_T}, s{S_G}")
    a(f"v_mov_b32 v{V_T + 1}, s{S_OMG}")
    a(f"v_mov_b32 v{V_T + 2}, 0")
    a(f"s_mov_b64 exec, 1")
    a(f"buffer_store_dword v{V_T}, v{V_T + 2}, s[{R_WS}:{R_WS + 3}], s{S_T0} offen")
    a(f"s_add_u32 s{S_T0}, s{S_T0}, 8192")
    a(f"buffer_store_dword v{V_T + 1}, v{V_T + 2}, s[{R_WS}:{R_WS + 3}], s{S_T0} offen")
    a.label("L_attn_end")
    a("s_endpgm")

    a.label("L_attn_slow")
    a("s_setprio 0")
    a(f"buffer_load_dwordx4 {vr(V_S, 4)}, v{V_L16}, s[{R_WS}:{R_WS + 3}], s{S_QOFF} offen")
    a(f"v_mov_b32 v{V_A}, v{V_L16}")
    for i in range(16):
        a(f"v_mov_b32 v{V_O + i}, 0")
    a(f"v_mov_b32 v{V_M}, 0xff7fffff")
    a(f"s_mov_b32 s{S_IT}, 0")
    a(f"s_lshl_b32 s{S_T2}, s{S_KVH}, 16")
    a(f"s_add_u32 s{S_T2}, s{S_T2}, {KB_OFF}")
    a(f"s_waitcnt vmcnt(0)")
    for i in range(4):
        q = V_S + i
        a(f"v_lshlrev_b32 v{V_T}, 16, v{q}")
        a(f"v_and_b32 v{V_T + 1}, 0xffff0000, v{q}")
        a(f"v_mul_f32 v{V_T}, v{V_C}, v{V_T}")
        a(f"v_mul_f32 v{V_T + 1}, v{V_C}, v{V_T + 1}")
        a(f"v_cvt_pk_bf16_f32 v{V_QH + i}, v{V_T}, v{V_T + 1}")
        a(f"v_lshlrev_b32 v{V_T + 2}, 16, v{V_QH + i}")
        a(f"v_and_b32 v{V_T + 3}, 0xffff0000, v{V_QH + i}")
        a(f"v_sub_f32 v{V_T}, v{V_T}, v{V_T + 2}")
        a(f"v_sub_f32 v{V_T + 1}, v{V_T + 1}, v{V_T + 3}")
        a(f"v_cvt_pk_bf16_f32 v{V_QL + i}, v{V_T}, v{V_T + 1}")
    a.label("L_attn_slow_loop")
    a(f"buffer_load_dwordx4 {vr(V_K, 4)}, v{V_L16}, s[{R_WS}:{R_WS + 3}], s{S_T2} offen")
    vread(V_V, 1024)
    vread(V_V + 4, 1024 + 256)
    a(f"s_waitcnt vmcnt(0) lgkmcnt(0)")
    mf(S0, V_K, V_QH, "0")
    mf(S0, V_K, V_QL, vr(S0, 16))
    a("s_nop 15")
    a("s_nop 3")
    tile_max(S0, V_T, V_T + 1)
    a(f"v_max_f32 v{V_T}, v{V_T}, v{V_M}")
    a(f"v_sub_f32 v{V_T + 1}, v{V_M}, v{V_T}")
    a(f"v_exp_f32 v{V_T + 1}, v{V_T + 1}")
    a(f"v_mov_b32 v{V_M}, v{V_T}")
    for i in range(16):
        a(f"v_mul_f32 v{V_O + i}, v{V_O + i}, v{V_T + 1}")
    for i in range(16):
        a(f"v_sub_f32 v{S0 + i}, v{S0 + i}, v{V_M}")
        a(f"v_exp_f32 v{S0 + i}, v{S0 + i}")
    a("s_nop 0")
    for i in range(8):
        a(f"v_cvt_pk_bf16_f32 v{V_P + i}, v{S0 + 2 * i}, v{S0 + 2 * i + 1}")
    a("s_nop 1")
    mf(V_O, V_V, V_P, vr(V_O, 16))
    mf(V_O, V_V + 4, V_P + 4, vr(V_O, 16))
    a("s_nop 15")
    a("s_nop 3")
    a(f"v_add_u32 v{V_A}, 0x800, v{V_A}")
    a(f"s_add_u32 s{S_T2}, s{S_T2}, 1024")
    a(f"s_add_u32 s{S_IT}, s{S_IT}, 1")
    a(f"s_cmp_lt_u32 s{S_IT}, 64")
    a(f"s_cbranch_scc1 L_attn_slow_loop")
    a(f"s_branch L_attn_epi")
    return K, NV


def gen_out(a):
    K = "out_kernel"
    kernel_begin(a, K)
    S_WOA, S_WOB, S_OUT, S_WS = 4, 6, 8, 10
    R_WA, R_OUT, R_WS = 12, 20, 24
    S_TB, S_CB, S_WAVE, S_TT, S_KH, S_BR = 28, 29, 30, 31, 32, 33
    S_T0, S_T1, S_T2 = 34, 35, 36
    S_OB = 37
    S_WB = 38
    S_M0 = 39
    S_Q = 40
    V_LANE, V_L16, V_WOFF, V_WA = 1, 2, 3, 4
    V_T = 5
    V_G, V_OMG = 12, 13
    V_XA = 14
    V_WA1 = 15
    V_WF = 16
    V_ACC = 32
    V_OFR = 64
    NV = 128

    a(f"s_cmp_ge_u32 s2, 256")
    a(f"s_cbranch_scc1 L_out_end")
    stamp(a, 0)
    a(f"s_load_dwordx2 s[{S_WS}:{S_WS + 1}], s[0:1], 88")
    a(f"s_load_dwordx2 s[{S_WOA}:{S_WOA + 1}], s[0:1], 32")
    a(f"s_load_dwordx2 s[{S_WOB}:{S_WOB + 1}], s[0:1], 56")
    a(f"s_load_dwordx2 s[{S_OUT}:{S_OUT + 1}], s[0:1], 72")
    a(f"v_and_b32 v{V_LANE}, 63, v0")
    a(f"v_lshrrev_b32 v{V_T}, 6, v0")
    a(f"v_lshlrev_b32 v{V_L16}, 4, v{V_LANE}")
    a(f"v_readfirstlane_b32 s{S_WAVE}, v{V_T}")
    a(f"s_and_b32 s{S_T0}, s2, 7")
    a(f"s_lshl_b32 s{S_T0}, s{S_T0}, 2")
    a(f"s_lshr_b32 s{S_T1}, s2, 3")
    a(f"s_and_b32 s{S_T1}, s{S_T1}, 3")
    a(f"s_add_u32 s{S_TB}, s{S_T0}, s{S_T1}")
    a(f"s_lshr_b32 s{S_CB}, s2, 5")
    a(f"s_and_b32 s{S_TT}, s{S_WAVE}, 1")
    a(f"s_lshr_b32 s{S_Q}, s{S_WAVE}, 1")
    a(f"s_and_b32 s{S_KH}, s{S_Q}, 1")
    a(f"s_lshr_b32 s{S_BR}, s{S_WAVE}, 2")
    a(f"v_lshrrev_b32 v{V_T}, 3, v{V_LANE}")
    a(f"v_lshlrev_b32 v{V_T + 1}, 10, v{V_T}")
    a(f"v_lshrrev_b32 v{V_T}, 1, v{V_T}")
    a(f"v_and_b32 v{V_T}, 1, v{V_T}")
    a(f"v_lshlrev_b32 v{V_T}, 2, v{V_T}")
    a(f"v_and_b32 v{V_T + 2}, 7, v{V_LANE}")
    a(f"v_xor_b32 v{V_T}, v{V_T}, v{V_T + 2}")
    a(f"v_lshlrev_b32 v{V_T}, 4, v{V_T}")
    a(f"v_add_u32 v{V_WOFF}, v{V_T}, v{V_T + 1}")
    a(f"s_lshl_b32 s{S_T0}, s{S_TB}, 1")
    a(f"s_add_u32 s{S_T0}, s{S_T0}, s{S_TT}")
    a(f"s_lshl_b32 s{S_OB}, s{S_T0}, 10")
    a(f"s_lshl_b32 s{S_T1}, s{S_Q}, 20")
    a(f"s_add_u32 s{S_OB}, s{S_OB}, s{S_T1}")
    a(f"s_add_u32 s{S_OB}, s{S_OB}, {OF_OFF}")
    a(f"s_lshl_b32 s{S_WB}, s{S_CB}, 7")
    a(f"s_lshl_b32 s{S_T0}, s{S_KH}, 18")
    a(f"s_add_u32 s{S_WB}, s{S_WB}, s{S_T0}")
    a(f"s_lshl_b32 s{S_T0}, s{S_TT}, 15")
    a(f"s_add_u32 s{S_WB}, s{S_WB}, s{S_T0}")
    a(f"s_lshl_b32 s{S_M0}, s{S_Q}, 15")
    a(f"s_lshl_b32 s{S_T0}, s{S_TT}, 12")
    a(f"s_add_u32 s{S_M0}, s{S_M0}, s{S_T0}")
    a(f"s_waitcnt lgkmcnt(0)")
    srd(a, R_WS, S_WS, WS_SIZE)
    a(f"s_cmp_eq_u32 s{S_BR}, 0")
    a(f"s_cselect_b32 s{R_WA}, s{S_WOA}, s{S_WOB}")
    a(f"s_cselect_b32 s{S_T0}, s{S_WOA + 1}, s{S_WOB + 1}")
    a(f"s_and_b32 s{R_WA + 1}, s{S_T0}, 0xffff")
    a(f"s_mov_b32 s{R_WA + 2}, {512 * 1024}")
    a(f"s_mov_b32 s{R_WA + 3}, 0x00020000")

    queue = []

    def dma_w(st):
        for q in range(4):
            a(f"s_add_u32 m0, s{S_M0}, {st * 8192 + q * 1024}")
            a(f"s_add_u32 s{S_T0}, s{S_WB}, {st * 65536 + q * 8192}")
            a(f"buffer_load_dwordx4 v{V_WOFF}, s[{R_WA}:{R_WA + 3}], s{S_T0} offen lds")
            queue.append(("W", st))

    def load_o(st):
        for s in range(4):
            hd = st * 4 + s
            a(f"s_add_u32 s{S_T0}, s{S_OB}, {hd * 65536}")
            a(f"buffer_load_dwordx4 {vr(V_OFR + 4 * hd, 4)}, v{V_L16}, s[{R_WS}:{R_WS + 3}], s{S_T0} offen")
            queue.append(("O", st))

    def wait_for(st):
        idx = max(i for i, (k, s) in enumerate(queue) if s == st and k in ("W", "O"))
        n = len(queue) - 1 - idx
        a(f"s_waitcnt vmcnt({n})")
        del queue[: idx + 1]

    for st in range(4):
        load_o(st)
        dma_w(st)
    a(f"v_and_b32 v{V_T}, 31, v{V_LANE}")
    a(f"v_lshlrev_b32 v{V_T}, 2, v{V_T}")
    a(f"s_lshl_b32 s{S_T0}, s{S_TB}, 1")
    a(f"s_add_u32 s{S_T0}, s{S_T0}, s{S_TT}")
    a(f"s_lshl_b32 s{S_T0}, s{S_T0}, 7")
    a(f"s_add_u32 s{S_T0}, s{S_T0}, {G_OFF}")
    a(f"buffer_load_dword v{V_G}, v{V_T}, s[{R_WS}:{R_WS + 3}], s{S_T0} offen")
    a(f"s_add_u32 s{S_T0}, s{S_T0}, 8192")
    a(f"buffer_load_dword v{V_OMG}, v{V_T}, s[{R_WS}:{R_WS + 3}], s{S_T0} offen")
    queue.append(("G", -1))
    queue.append(("G", -1))
    srd(a, R_OUT, S_OUT, 2048 * 1024)
    a(f"v_lshrrev_b32 v{V_T}, 5, v{V_LANE}")
    a(f"v_lshrrev_b32 v{V_T + 1}, 2, v{V_LANE}")
    a(f"v_and_b32 v{V_T + 1}, 3, v{V_T + 1}")
    a(f"v_lshl_add_u32 v{V_T}, v{V_T}, 2, v{V_T + 1}")
    a(f"v_lshlrev_b32 v{V_T}, 7, v{V_T}")
    a(f"v_lshrrev_b32 v{V_T + 1}, 1, v{V_T + 1}")
    a(f"v_lshlrev_b32 v{V_T + 1}, 6, v{V_T + 1}")
    a(f"v_add_u32 v{V_T}, v{V_T}, v{V_T + 1}")
    a(f"v_lshrrev_b32 v{V_T + 1}, 4, v{V_LANE}")
    a(f"v_and_b32 v{V_T + 1}, 1, v{V_T + 1}")
    a(f"v_lshlrev_b32 v{V_T + 1}, 5, v{V_T + 1}")
    a(f"v_add_u32 v{V_T}, v{V_T}, v{V_T + 1}")
    a(f"v_and_b32 v{V_T + 1}, 3, v{V_LANE}")
    a(f"v_lshlrev_b32 v{V_T + 1}, 3, v{V_T + 1}")
    a(f"v_add_u32 v{V_T}, v{V_T}, v{V_T + 1}")
    a(f"s_lshl_b32 s{S_T0}, s{S_Q}, 15")
    a(f"v_add_u32 v{V_WA}, s{S_T0}, v{V_T}")
    a(f"v_xor_b32 v{V_WA1}, 64, v{V_WA}")
    a(f"s_lshl_b32 s{S_T0}, s{S_WAVE}, 13")
    a(f"v_add_u32 v{V_XA}, s{S_T0}, v{V_L16}")
    for i in range(32):
        a(f"v_mov_b32 v{V_ACC + i}, 0")
    nstep = 0
    for st in range(4):
        wait_for(st)
        a("s_barrier")
        if st == 0:
            stamp(a, 1)

        def rd(s, wb):
            off = st * 8192 + s * 2048
            for ct in range(2):
                wa = V_WA if ct == 0 else V_WA1
                a(f"ds_read_b64_tr_b16 {vr(V_WF + 8 * wb + 4 * ct, 2)}, v{wa} offset:{off}")
                a(f"ds_read_b64_tr_b16 {vr(V_WF + 8 * wb + 4 * ct + 2, 2)}, v{wa} offset:{off + 1024}")
        rd(0, 0)
        for s in range(4):
            if s < 3:
                rd(s + 1, (s + 1) & 1)
                a("s_waitcnt lgkmcnt(4)")
            else:
                a("s_waitcnt lgkmcnt(0)")
            for ct in range(2):
                acc = vr(V_ACC + 16 * ct, 16)
                a(f"v_mfma_f32_32x32x16_bf16 {acc}, {vr(V_WF + 8 * (s & 1) + 4 * ct, 4)}, {vr(V_OFR + 4 * (st * 4 + s), 4)}, {acc}")
    stamp(a, 2)
    a("s_waitcnt vmcnt(0)")
    a("s_barrier")
    a("s_nop 15")
    for q in range(8):
        a(f"ds_write_b128 v{V_XA}, {vr(V_ACC + 4 * q, 4)} offset:{q * 1024}")
    a(f"v_and_b32 v{V_T}, 31, v{V_LANE}")
    a(f"v_lshlrev_b32 v{V_T}, 10, v{V_T}")
    a(f"v_lshrrev_b32 v{V_T + 1}, 5, v{V_LANE}")
    a(f"v_lshlrev_b32 v{V_T + 1}, 3, v{V_T + 1}")
    a(f"v_add_u32 v{V_T}, v{V_T}, v{V_T + 1}")
    a(f"s_lshl_b32 s{S_T0}, s{S_TB}, 1")
    a(f"s_add_u32 s{S_T0}, s{S_T0}, s{S_TT}")
    a(f"s_lshl_b32 s{S_T0}, s{S_T0}, 15")
    a(f"s_lshl_b32 s{S_T1}, s{S_CB}, 7")
    a(f"s_add_u32 s{S_T0}, s{S_T0}, s{S_T1}")
    a(f"s_lshl_b32 s{S_T1}, s{S_Q}, 5")
    a(f"s_add_u32 s{S_T0}, s{S_T0}, s{S_T1}")
    a(f"s_lshl_b32 s{S_T1}, s{S_TT}, 13")
    a(f"s_lshl_b32 s{S_T2}, s{S_Q}, 11")
    a(f"s_add_u32 s{S_T1}, s{S_T1}, s{S_T2}")
    a(f"v_add_u32 v{V_XA}, s{S_T1}, v{V_L16}")
    a("s_waitcnt lgkmcnt(0)")
    a("s_barrier")
    for qq in range(4):
        for h in range(2):
            a(f"ds_read_b128 {vr(V_OFR + 8 * qq + 4 * h, 4)}, v{V_XA} offset:{qq * 16384 + h * 1024}")
    a("s_waitcnt lgkmcnt(0)")
    for i in range(8):
        A, B = V_OFR + i, V_OFR + 16 + i
        a(f"v_add_f32 v{A}, v{A}, v{A + 8}")
        a(f"v_add_f32 v{B}, v{B}, v{B + 8}")
        a(f"v_cvt_pk_bf16_f32 v{A}, 0, v{A}")
        a(f"v_cvt_pk_bf16_f32 v{B}, 0, v{B}")
        a(f"v_mul_f32 v{A}, v{V_G}, v{A}")
        a(f"v_mul_f32 v{B}, v{V_OMG}, v{B}")
        a(f"v_cvt_pk_bf16_f32 v{A}, 0, v{A}")
        a(f"v_cvt_pk_bf16_f32 v{B}, 0, v{B}")
        a(f"v_add_f32 v{A}, v{A}, v{B}")
    for h in range(2):
        d = V_ACC + 2 * h
        b = V_OFR + 4 * h
        a(f"v_cvt_pk_bf16_f32 v{d}, v{b}, v{b + 1}")
        a(f"v_cvt_pk_bf16_f32 v{d + 1}, v{b + 2}, v{b + 3}")
        a(f"buffer_store_dwordx2 {vr(d, 2)}, v{V_T}, s[{R_OUT}:{R_OUT + 3}], s{S_T0} offen offset:{16 * h}")
    if STAMP:
        a("s_waitcnt vmcnt(0)")
    stamp(a, 3)
    stamp_store(a, 2, S_WAVE, R_WS, V_T)
    a.label("L_out_end")
    a("s_endpgm")
    return K, NV


def main():
    out = [x for x in sys.argv[1:] if not x.startswith("--")]
    a = Asm()
    a.raw("; @launch kernel=proj_kernel grid=(256,1,1) block=(320,1,1) lds=147456")
    a.raw("; @launch kernel=attn_kernel grid=(256,1,1) block=(1024,1,1) lds=139264")
    a.raw("; @launch kernel=out_kernel grid=(256,1,1) block=(512,1,1) lds=131072")
    a.raw('.amdgcn_target "amdgcn-amd-amdhsa--gfx950"')
    ks = [gen_proj(a), gen_attn(a), gen_out(a)]
    for k, nv in ks:
        kernel_desc(a, k, nv)
    path = out[0] if out else f"cdna_kernels/{NAME}.s"
    open(path, "w").write(a.text())
    print("wrote", path, len(a.lines), "lines")


if __name__ == "__main__":
    main()
```

```python
import sys, struct

NAME = "gated_mix__grouped_kv_mqa__mha_block__prompt"

QF_OFF = 0
KV_OFF = 4 << 20
OF_OFF = 9 << 20
G_OFF = 13 << 20
KB_OFF = 16 << 20
FL_OFF = 13 * (1 << 20) + 65536
WS_SIZE = 20 << 20
ST_OFF = 14 << 20

C_SCALE = 0.25 * 1.4426950408889634


def f32bits(x):
    return struct.unpack("<I", struct.pack("<f", x))[0]


class Asm:
    def __init__(self):
        self.lines = []

    def __call__(self, s):
        for ln in s.strip("\n").split("\n"):
            self.lines.append("    " + ln.strip())

    def label(self, s):
        self.lines.append(s + ":")

    def raw(self, s):
        self.lines.append(s)

    def text(self):
        return "\n".join(self.lines) + "\n"


def vr(b, n=1):
    return f"v{b}" if n == 1 else f"v[{b}:{b + n - 1}]"


def sr(b, n=1):
    return f"s{b}" if n == 1 else f"s[{b}:{b + n - 1}]"


def srd(a, d, base, nbytes):
    a(f"s_mov_b32 s{d}, s{base}")
    a(f"s_and_b32 s{d + 1}, s{base + 1}, 0xffff")
    a(f"s_mov_b32 s{d + 2}, {nbytes}")
    a(f"s_mov_b32 s{d + 3}, 0x00020000")


STAMP = "--stamp" in sys.argv
STP = " sc0 sc1"
for _x in sys.argv:
    if _x.startswith("--stp="):
        STP = " " + _x[6:].replace("+", " ")


def stamp(a, i):
    if STAMP:
        a(f"s_memtime s[{60 + 4 * i}:{61 + 4 * i}]")
        a(f"s_memrealtime s[{62 + 4 * i}:{63 + 4 * i}]")
        a(f"s_waitcnt lgkmcnt(0)")


def stamp_store(a, region, s_wave, r_ws, vt, nw=16):
    if not STAMP:
        return
    a(f"s_mul_i32 s80, s2, {nw}")
    a(f"s_add_u32 s80, s80, s{s_wave}")
    a(f"s_lshl_b32 s80, s80, 6")
    a(f"s_add_u32 s80, s80, {ST_OFF + region * 262144}")
    a(f"v_mov_b32 v{vt + 1}, 0")
    a(f"s_mov_b64 exec, 1")
    for i in range(16):
        a(f"v_mov_b32 v{vt}, s{60 + i}")
        a(f"buffer_store_dword v{vt}, v{vt + 1}, s[{r_ws}:{r_ws + 3}], s80 offen offset:{4 * i}")
    a(f"s_mov_b64 exec, -1")


def kernel_begin(a, name):
    a.raw(".text")
    a.raw(f".globl {name}")
    a.raw(".p2align 8")
    a.raw(f".type {name},@function")
    a.label(name)


def kernel_desc(a, name, nvgpr, nsgpr=102):
    acc = (nvgpr + 3) // 4 * 4
    a.raw('.section .rodata,"a"')
    a.raw(".p2align 6")
    a.raw(f".amdhsa_kernel {name}")
    a.raw(f"  .amdhsa_next_free_vgpr {nvgpr}")
    a.raw(f"  .amdhsa_next_free_sgpr {nsgpr}")
    a.raw(f"  .amdhsa_accum_offset {acc}")
    a.raw("  .amdhsa_group_segment_fixed_size 0")
    a.raw("  .amdhsa_kernarg_size 96")
    a.raw("  .amdhsa_user_sgpr_count 2")
    a.raw("  .amdhsa_user_sgpr_kernarg_segment_ptr 1")
    a.raw("  .amdhsa_system_sgpr_workgroup_id_x 1")
    a.raw(".end_amdhsa_kernel")


def gate_row_code(a, vx, vg, vt):
    a(f"v_mov_b32 v{vt + 4}, 0")
    for i in range(4):
        x, g = vx + i, vg + i
        a(f"v_lshlrev_b32 v{vt}, 16, v{x}")
        a(f"v_and_b32 v{vt + 1}, 0xffff0000, v{x}")
        a(f"v_lshlrev_b32 v{vt + 2}, 16, v{g}")
        a(f"v_and_b32 v{vt + 3}, 0xffff0000, v{g}")
        a(f"v_mul_f32 v{vt}, v{vt}, v{vt + 2}")
        a(f"v_mul_f32 v{vt + 1}, v{vt + 1}, v{vt + 3}")
        a(f"v_cvt_pk_bf16_f32 v{vt}, v{vt}, v{vt + 1}")
        a(f"v_lshlrev_b32 v{vt + 1}, 16, v{vt}")
        a(f"v_and_b32 v{vt}, 0xffff0000, v{vt}")
        a(f"v_add_f32 v{vt + 4}, v{vt + 4}, v{vt + 1}")
        a(f"v_add_f32 v{vt + 4}, v{vt + 4}, v{vt}")
    for ctrl in ("quad_perm:[1,0,3,2]", "quad_perm:[2,3,0,1]", "row_half_mirror", "row_mirror"):
        a(f"s_nop 1")
        a(f"v_add_f32_dpp v{vt}, v{vt + 4}, v{vt + 4} {ctrl} row_mask:0xf bank_mask:0xf")
        a(f"v_mov_b32 v{vt + 4}, v{vt}")
    a(f"s_nop 1")
    a(f"v_permlane16_swap_b32 v{vt}, v{vt + 4}")
    a(f"s_nop 1")
    a(f"v_add_f32 v{vt + 4}, v{vt}, v{vt + 4}")
    a(f"v_mov_b32 v{vt}, v{vt + 4}")
    a(f"s_nop 1")
    a(f"v_permlane32_swap_b32 v{vt}, v{vt + 4}")
    a(f"s_nop 1")
    a(f"v_add_f32 v{vt}, v{vt}, v{vt + 4}")
    a(f"v_cvt_pk_bf16_f32 v{vt}, 0, v{vt}")
    a(f"v_mul_f32 v{vt}, {f32bits(-1.4426950408889634):#x}, v{vt}")
    a(f"v_exp_f32 v{vt}, v{vt}")
    a(f"s_nop 0")
    a(f"v_add_f32 v{vt}, 1.0, v{vt}")
    a(f"v_rcp_f32 v{vt}, v{vt}")
    a(f"s_nop 0")
    a(f"v_cvt_pk_bf16_f32 v{vt}, 0, v{vt}")
    a(f"v_sub_f32 v{vt + 1}, 1.0, v{vt}")
    a(f"v_cvt_pk_bf16_f32 v{vt + 1}, 0, v{vt + 1}")


class VQ:
    def __init__(self, a):
        self.a = a
        self.q = []

    def push(self, tag):
        self.q.append(tag)

    def wait(self, *tags):
        idx = max([i for i, t in enumerate(self.q) if t in tags], default=-1)
        if idx < 0:
            return
        n = len(self.q) - 1 - idx
        assert n <= 63
        self.a(f"s_waitcnt vmcnt({n})")
        del self.q[: idx + 1]


def gen_proj(a):
    K = "proj_kernel"
    kernel_begin(a, K)
    S_X, S_WQ, S_WK, S_WV, S_WQKV, S_WS = 4, 6, 8, 10, 12, 14
    R_X, R_W, R_WS, R_GW = 16, 20, 24, 28
    S_TB, S_CB, S_WAVE = 32, 33, 34
    S_XROW = 35
    S_WROW = 36
    S_PITCH = 37
    S_T0, S_T1, S_T2, S_T3 = 38, 39, 40, 41
    S_M0 = 42
    S_M0X = 43
    S_P4 = 44
    S_P64 = 45
    S_DBASE, S_HSTR, S_TSTR = 46, 47, 48
    S_GW = 50
    V_LANE, V_L16, V_WOFF, V_WA = 1, 2, 3, 4
    V_XA = 5
    V_XB = 13
    V_T = 21
    V_XF = 28
    V_PK = 44
    V_ACC = 52
    V_W = 84
    NV = 212
    SPW = 131072
    XBASE = [65536, 98304, 0, 32768]

    a(f"s_cmp_ge_u32 s2, 256")
    a(f"s_cbranch_scc1 L_proj_end")
    stamp(a, 0)
    a(f"s_load_dwordx8 s[4:11], s[0:1], 0")
    a(f"s_load_dwordx2 s[12:13], s[0:1], 48")
    a(f"s_load_dwordx2 s[14:15], s[0:1], 88")
    a(f"s_load_dwordx2 s[{S_GW}:{S_GW + 1}], s[0:1], 64")
    a(f"v_and_b32 v{V_LANE}, 63, v0")
    a(f"v_lshrrev_b32 v{V_T}, 6, v0")
    a(f"v_lshlrev_b32 v{V_L16}, 4, v{V_LANE}")
    a(f"s_and_b32 s{S_T0}, s2, 1")
    a(f"s_lshl_b32 s{S_T0}, s{S_T0}, 3")
    a(f"s_lshr_b32 s{S_T1}, s2, 3")
    a(f"s_and_b32 s{S_T2}, s{S_T1}, 7")
    a(f"s_add_u32 s{S_TB}, s{S_T0}, s{S_T2}")
    a(f"s_and_b32 s{S_T0}, s2, 6")
    a(f"s_lshl_b32 s{S_T0}, s{S_T0}, 1")
    a(f"s_lshr_b32 s{S_T1}, s{S_T1}, 3")
    a(f"s_add_u32 s{S_CB}, s{S_T0}, s{S_T1}")
    a(f"v_readfirstlane_b32 s{S_WAVE}, v{V_T}")
    a(f"v_and_b32 v{V_T}, 31, v{V_LANE}")
    a(f"v_and_b32 v{V_T + 1}, 15, v{V_LANE}")
    a(f"v_lshrrev_b32 v{V_T + 2}, 5, v{V_LANE}")
    a(f"v_xor_b32 v{V_T + 1}, v{V_T + 1}, v{V_T + 2}")
    a(f"v_lshlrev_b32 v{V_T + 1}, 4, v{V_T + 1}")
    a(f"v_lshlrev_b32 v{V_T}, 10, v{V_T}")
    a(f"v_add_u32 v{V_XA}, v{V_T}, v{V_T + 1}")
    for e in range(1, 8):
        a(f"v_xor_b32 v{V_XA + e}, {32 * e}, v{V_XA}")
    for e in range(8):
        a(f"v_add_u32 v{V_XB + e}, 0x10000, v{V_XA + e}")
    a(f"s_cmp_eq_u32 s{S_WAVE}, 4")
    a(f"s_cbranch_scc1 L_proj_special")
    a(f"s_lshl_b32 s{S_T0}, s{S_TB}, 7")
    a(f"s_lshl_b32 s{S_T1}, s{S_WAVE}, 3")
    a(f"s_add_u32 s{S_T0}, s{S_T0}, s{S_T1}")
    a(f"s_lshl_b32 s{S_XROW}, s{S_T0}, 10")
    a(f"s_lshl_b32 s{S_M0}, s{S_WAVE}, 12")
    a(f"s_lshl_b32 s{S_M0X}, s{S_WAVE}, 13")
    a(f"s_waitcnt lgkmcnt(0)")
    srd(a, R_X, S_X, 2048 * 1024)
    a(f"s_cmp_lt_u32 s{S_CB}, 4")
    a(f"s_cselect_b32 s{R_W}, s{S_WQ}, s{S_WQKV}")
    a(f"s_cselect_b32 s{S_T1}, s{S_WQ + 1}, s{S_WQKV + 1}")
    a(f"s_cselect_b32 s{S_PITCH}, 1, 3")
    a(f"s_cselect_b32 s{S_T0}, 0, 4")
    a(f"s_and_b32 s{R_W + 1}, s{S_T1}, 0xffff")
    a(f"s_lshl_b32 s{R_W + 2}, s{S_PITCH}, 19")
    a(f"s_mov_b32 s{R_W + 3}, 0x00020000")
    a(f"s_lshl_b32 s{S_PITCH}, s{S_PITCH}, 10")
    a(f"s_sub_u32 s{S_T0}, s{S_CB}, s{S_T0}")
    a(f"s_lshl_b32 s{S_T0}, s{S_T0}, 8")
    a(f"s_lshl_b32 s{S_P4}, s{S_PITCH}, 2")
    a(f"s_lshl_b32 s{S_P64}, s{S_PITCH}, 6")
    a(f"s_lshl_b32 s{S_T1}, s{S_WAVE}, 4")
    a(f"s_mul_i32 s{S_T1}, s{S_T1}, s{S_PITCH}")
    a(f"s_add_u32 s{S_WROW}, s{S_T0}, s{S_T1}")
    a(f"v_lshrrev_b32 v{V_T}, 4, v{V_LANE}")
    a(f"v_mul_lo_u32 v{V_T + 1}, v{V_T}, s{S_PITCH}")
    a(f"v_lshlrev_b32 v{V_T}, 2, v{V_T}")
    a(f"v_and_b32 v{V_T + 2}, 15, v{V_LANE}")
    a(f"v_xor_b32 v{V_T}, v{V_T}, v{V_T + 2}")
    a(f"v_lshlrev_b32 v{V_T}, 4, v{V_T}")
    a(f"v_add_u32 v{V_WOFF}, v{V_T}, v{V_T + 1}")

    def dma_w(vq, kc):
        slot = kc & 3
        a(f"s_mul_i32 s{S_T1}, s{S_P64}, {kc}")
        a(f"s_add_u32 s{S_T1}, s{S_T1}, s{S_WROW}")
        for q in range(4):
            a(f"s_add_u32 m0, s{S_M0}, {slot * 16384 + q * 1024}")
            a(f"s_nop 0")
            a(f"buffer_load_dwordx4 v{V_WOFF}, s[{R_W}:{R_W + 3}], s{S_T1} offen lds")
            vq.push(f"W{kc}")
            if q < 3:
                a(f"s_add_u32 s{S_T1}, s{S_T1}, s{S_P4}")

    def dma_x(vq, t):
        for q in range(8):
            a(f"v_xor_b32 v{V_PK + q}, {q << 4}, v{V_T + 3}")
        for q in range(8):
            a(f"s_add_u32 m0, s{S_M0X}, {XBASE[t] + q * 1024}")
            a(f"s_add_u32 s{S_T0}, s{S_XROW}, {t * 32768 + q * 1024}")
            a(f"buffer_load_dwordx4 v{V_PK + q}, s[{R_X}:{R_X + 3}], s{S_T0} offen lds")
            vq.push(f"X{t}")

    a(f"s_and_b32 s{S_T0}, s{S_WAVE}, 1")
    a(f"s_lshl_b32 s{S_T0}, s{S_T0}, 7")
    a(f"v_xor_b32 v{V_T + 3}, s{S_T0}, v{V_L16}")
    vq0 = VQ(a)
    srd(a, R_GW, S_GW, 1024)
    a(f"s_lshl_b32 s{S_T0}, s{S_TB}, 7")
    a(f"s_lshl_b32 s{S_T1}, s{S_CB}, 3")
    a(f"s_add_u32 s{S_T0}, s{S_T0}, s{S_T1}")
    a(f"s_lshl_b32 s{S_T1}, s{S_WAVE}, 1")
    a(f"s_add_u32 s{S_T3}, s{S_T0}, s{S_T1}")
    a(f"s_lshl_b32 s{S_T0}, s{S_T3}, 10")
    a(f"buffer_load_dwordx4 {vr(V_ACC, 4)}, v{V_L16}, s[{R_X}:{R_X + 3}], s{S_T0} offen")
    a(f"buffer_load_dwordx4 {vr(V_ACC + 4, 4)}, v{V_L16}, s[{R_X}:{R_X + 3}], s{S_T0} offen offset:1024")
    a(f"buffer_load_dwordx4 {vr(V_ACC + 8, 4)}, v{V_L16}, s[{R_GW}:{R_GW + 3}], 0 offen")
    for _ in range(3):
        vq0.push("G")
    dma_w(vq0, 0)
    dma_x(vq0, 0)
    for kc in range(1, 4):
        dma_w(vq0, kc)
    dma_x(vq0, 1)
    srd(a, R_WS, S_WS, WS_SIZE)
    a(f"v_lshrrev_b32 v{V_T}, 5, v{V_LANE}")
    a(f"v_lshrrev_b32 v{V_T + 1}, 2, v{V_LANE}")
    a(f"v_and_b32 v{V_T + 1}, 3, v{V_T + 1}")
    a(f"v_lshl_add_u32 v{V_T}, v{V_T}, 3, v{V_T + 1}")
    a(f"v_lshlrev_b32 v{V_T}, 8, v{V_T}")
    a(f"v_xor_b32 v{V_T + 1}, s{S_WAVE}, v{V_T + 1}")
    a(f"v_lshlrev_b32 v{V_T + 1}, 6, v{V_T + 1}")
    a(f"v_add_u32 v{V_T}, v{V_T}, v{V_T + 1}")
    a(f"v_lshrrev_b32 v{V_T + 1}, 4, v{V_LANE}")
    a(f"v_and_b32 v{V_T + 1}, 1, v{V_T + 1}")
    a(f"v_lshlrev_b32 v{V_T + 1}, 5, v{V_T + 1}")
    a(f"v_add_u32 v{V_T}, v{V_T}, v{V_T + 1}")
    a(f"v_and_b32 v{V_T + 1}, 3, v{V_LANE}")
    a(f"v_lshlrev_b32 v{V_T + 1}, 3, v{V_T + 1}")
    a(f"v_add_u32 v{V_WA}, v{V_T}, v{V_T + 1}")
    vq0.wait("G")
    gate_row_code(a, V_ACC, V_ACC + 8, V_XF)
    a(f"v_mov_b32 v{V_ACC + 12}, v{V_XF}")
    a(f"v_mov_b32 v{V_ACC + 13}, v{V_XF + 1}")
    gate_row_code(a, V_ACC + 4, V_ACC + 8, V_XF)
    a(f"v_cmp_eq_u32 vcc, 0, v{V_LANE}")
    a(f"s_lshl_b32 s{S_T0}, s{S_T3}, 2")
    a(f"s_add_u32 s{S_T0}, s{S_T0}, {G_OFF}")
    a(f"v_cndmask_b32 v{V_XF}, v{V_XF}, v{V_ACC + 12}, vcc")
    a(f"v_cndmask_b32 v{V_XF + 1}, v{V_XF + 1}, v{V_ACC + 13}, vcc")
    a(f"v_lshlrev_b32 v{V_XF + 2}, 2, v{V_LANE}")
    a(f"s_add_u32 s{S_T1}, s{S_T0}, 8192")
    a(f"s_mov_b64 exec, 3")
    a(f"buffer_store_dword v{V_XF}, v{V_XF + 2}, s[{R_WS}:{R_WS + 3}], s{S_T0} offen{STP}")
    a(f"buffer_store_dword v{V_XF + 1}, v{V_XF + 2}, s[{R_WS}:{R_WS + 3}], s{S_T1} offen{STP}")
    a(f"s_mov_b64 exec, -1")
    vq0.push("GS")
    vq0.push("GS")
    a(f"s_lshl_b32 s{S_T0}, s{S_CB}, 2")
    a(f"s_add_u32 s{S_T0}, s{S_T0}, s{S_WAVE}")
    a(f"s_cmp_ge_u32 s{S_CB}, 12")
    a(f"s_cbranch_scc1 L_proj_N")

    def xread(t, ks, buf):
        base = XBASE[t]
        xa = (V_XB if base >= 65536 else V_XA) + (ks & 7)
        a(f"ds_read_b128 {vr(V_XF + 4 * buf, 4)}, v{xa} offset:{(base & 0xffff) + (ks >> 3) * 256}")

    def wread(ks, dst, special):
        if special:
            for half in range(2):
                a(f"ds_read_b64_tr_b16 {vr(dst + 2 * half, 2)}, v{V_WA} offset:{(16 * ks + 4 * half) * 32}")
        else:
            kc, s = ks >> 2, ks & 3
            for half in range(2):
                a(f"ds_read_b64_tr_b16 {vr(dst + 2 * half, 2)}, v{V_WA} offset:{(kc & 3) * 16384 + (16 * s + 4 * half) * 256}")

    def mfma(typ, acc, wf, xf, first):
        c = "0" if first else vr(acc, 16)
        if typ == "T":
            a(f"v_mfma_f32_32x32x16_bf16 {vr(acc, 16)}, {vr(wf, 4)}, {vr(xf, 4)}, {c}")
        else:
            a(f"v_mfma_f32_32x32x16_bf16 {vr(acc, 16)}, {vr(xf, 4)}, {vr(wf, 4)}, {c}")

    def body(typ, vq, store_tile):
        for kc in range(8):
            if kc == 0:
                vq.wait("W0", "X0")
            else:
                vq.wait(f"W{kc}")
            a("s_barrier")
            if kc == 0:
                stamp(a, 1)
            if 1 <= kc <= 4:
                dma_w(vq, kc + 3)
            for s in range(4):
                ks = kc * 4 + s
                wread(ks, V_W + 4 * ks, False)
                xread(0, ks, s)
            for s in range(4):
                ks = kc * 4 + s
                a(f"s_waitcnt lgkmcnt({3 * (3 - s)})")
                mfma(typ, V_ACC, V_W + 4 * ks, V_XF + 4 * s, ks == 0)
        for t in range(1, 4):
            vq.wait(f"X{t}")
            a("s_barrier")
            if t == 1:
                dma_x(vq, 2)
                dma_x(vq, 3)
            acc = V_ACC + 16 * (t & 1)
            for ks in range(3):
                xread(t, ks, ks)
            for ks in range(32):
                if ks + 3 < 32:
                    xread(t, ks + 3, (ks + 3) & 3)
                    a("s_waitcnt lgkmcnt(3)")
                else:
                    a(f"s_waitcnt lgkmcnt({31 - ks})")
                mfma(typ, acc, V_W + 4 * ks, V_XF + 4 * (ks & 3), ks == 0)
                if ks == 6:
                    store_tile(t - 1, V_ACC + 16 * ((t - 1) & 1), vq)
        stamp(a, 2)
        a("s_nop 15")
        store_tile(3, V_ACC + 16, vq)
        if STAMP:
            a("s_waitcnt vmcnt(0)")
        stamp(a, 3)
        stamp_store(a, 1, S_WAVE, R_WS, V_T)
        a("s_endpgm")

    def pack(acc, half, d):
        for i in range(4):
            a(f"v_cvt_pk_bf16_f32 v{d + i}, v{acc + 8 * half + 2 * i}, v{acc + 8 * half + 2 * i + 1}")

    a(f"s_cmp_lt_u32 s{S_T0}, 32")
    a(f"s_cselect_b32 s{S_HSTR}, 1, 2")
    a(f"s_cselect_b32 s{S_T1}, {QF_OFF}, {(KV_OFF + 131072 - 64 * 131072) & 0xffffffff}")
    a(f"s_lshl_b32 s{S_TSTR}, s{S_HSTR}, 10")
    a(f"s_lshl_b32 s{S_HSTR}, s{S_HSTR}, 16")
    a(f"s_lshl_b32 s{S_T0}, s{S_T0}, 1")
    a(f"s_mul_i32 s{S_T0}, s{S_T0}, s{S_HSTR}")
    a(f"s_add_u32 s{S_DBASE}, s{S_T0}, s{S_T1}")
    a(f"s_lshl_b32 s{S_T0}, s{S_TB}, 2")
    a(f"s_mul_i32 s{S_T0}, s{S_T0}, s{S_TSTR}")
    a(f"s_add_u32 s{S_DBASE}, s{S_DBASE}, s{S_T0}")

    def store_T(t, acc, vq):
        pack(acc, 0, V_PK)
        pack(acc, 1, V_PK + 4)
        a(f"s_add_u32 s{S_T2}, s{S_DBASE}, s{S_HSTR}")
        a(f"buffer_store_dwordx4 {vr(V_PK, 4)}, v{V_L16}, s[{R_WS}:{R_WS + 3}], s{S_DBASE} offen{STP}")
        a(f"buffer_store_dwordx4 {vr(V_PK + 4, 4)}, v{V_L16}, s[{R_WS}:{R_WS + 3}], s{S_T2} offen{STP}")
        a(f"s_add_u32 s{S_DBASE}, s{S_DBASE}, s{S_TSTR}")
        vq.push("S")
        vq.push("S")
    import copy
    vqT = VQ(a)
    vqT.q = list(vq0.q)
    body("T", vqT, store_T)

    a.label("L_proj_N")
    a(f"s_sub_u32 s{S_T0}, s{S_T0}, 48")
    a(f"s_lshl_b32 s{S_T0}, s{S_T0}, 18")
    a(f"s_add_u32 s{S_DBASE}, s{S_T0}, {KV_OFF + 131072 + 1024}")
    a(f"s_lshl_b32 s{S_T0}, s{S_TB}, 13")
    a(f"s_add_u32 s{S_DBASE}, s{S_DBASE}, s{S_T0}")
    a(f"v_lshrrev_b32 v{V_T}, 4, v{V_LANE}")
    a(f"v_and_b32 v{V_T}, 1, v{V_T}")
    a(f"v_lshlrev_b32 v{V_T}, 17, v{V_T}")
    a(f"v_lshrrev_b32 v{V_T + 1}, 5, v{V_LANE}")
    a(f"v_lshlrev_b32 v{V_T + 1}, 9, v{V_T + 1}")
    a(f"v_add_u32 v{V_T}, v{V_T}, v{V_T + 1}")
    a(f"v_and_b32 v{V_T + 1}, 15, v{V_LANE}")
    a(f"v_lshlrev_b32 v{V_T + 1}, 4, v{V_T + 1}")
    a(f"v_add_u32 v{V_T + 4}, v{V_T}, v{V_T + 1}")

    def store_N(t, acc, vq):
        pack(acc, 0, V_PK)
        pack(acc, 1, V_PK + 4)
        a(f"buffer_store_dwordx4 {vr(V_PK, 4)}, v{V_T + 4}, s[{R_WS}:{R_WS + 3}], s{S_DBASE} offen{STP}")
        a(f"buffer_store_dwordx4 {vr(V_PK + 4, 4)}, v{V_T + 4}, s[{R_WS}:{R_WS + 3}], s{S_DBASE} offen offset:256{STP}")
        a(f"s_add_u32 s{S_DBASE}, s{S_DBASE}, 2048")
        vq.push("S")
        vq.push("S")
    vqN = VQ(a)
    vqN.q = list(vq0.q)
    body("N", vqN, store_N)

    a.label("L_proj_special")
    a(f"s_cmp_ge_u32 s{S_CB}, 8")
    a(f"s_cbranch_scc1 L_proj_end")
    a(f"s_waitcnt lgkmcnt(0)")
    srd(a, R_WS, S_WS, WS_SIZE)
    a(f"s_cmp_lt_u32 s{S_CB}, 4")
    a(f"s_cselect_b32 s{R_W}, s{S_WK}, s{S_WV}")
    a(f"s_cselect_b32 s{S_T1}, s{S_WK + 1}, s{S_WV + 1}")
    a(f"s_and_b32 s{R_W + 1}, s{S_T1}, 0xffff")
    a(f"s_mov_b32 s{R_W + 2}, 16384")
    a(f"s_mov_b32 s{R_W + 3}, 0x00020000")
    for i in range(16):
        a(f"s_mov_b32 m0, {SPW + i * 1024}")
        a(f"s_mov_b32 s{S_T0}, {i * 1024}")
        a(f"buffer_load_dwordx4 v{V_L16}, s[{R_W}:{R_W + 3}], s{S_T0} offen lds")
    a(f"v_lshrrev_b32 v{V_T}, 5, v{V_LANE}")
    a(f"v_lshrrev_b32 v{V_T + 1}, 2, v{V_LANE}")
    a(f"v_and_b32 v{V_T + 1}, 3, v{V_T + 1}")
    a(f"v_lshl_add_u32 v{V_T}, v{V_T}, 3, v{V_T + 1}")
    a(f"v_lshlrev_b32 v{V_T}, 5, v{V_T}")
    a(f"v_and_b32 v{V_T + 1}, 3, v{V_LANE}")
    a(f"v_lshlrev_b32 v{V_T + 1}, 3, v{V_T + 1}")
    a(f"v_add_u32 v{V_T}, v{V_T}, v{V_T + 1}")
    a(f"v_add_u32 v{V_WA}, {SPW}, v{V_T}")
    a(f"s_and_b32 s{S_T0}, s{S_CB}, 3")
    a(f"s_lshl_b32 s{S_T1}, s{S_TB}, 2")
    a(f"s_add_u32 s{S_T1}, s{S_T1}, s{S_T0}")
    a(f"s_lshl_b32 s{S_DBASE}, s{S_T1}, 11")
    a(f"s_add_u32 s{S_DBASE}, s{S_DBASE}, {KV_OFF}")
    a(f"v_lshrrev_b32 v{V_T + 1}, 5, v{V_LANE}")
    a(f"v_lshlrev_b32 v{V_T + 1}, 9, v{V_T + 1}")
    a(f"v_and_b32 v{V_T}, 15, v{V_LANE}")
    a(f"v_lshlrev_b32 v{V_T}, 4, v{V_T}")
    a(f"v_add_u32 v{V_T}, v{V_T}, v{V_T + 1}")
    a(f"v_and_b32 v{V_T + 1}, 16, v{V_LANE}")
    a(f"v_mov_b32 v{V_T + 2}, 0x40000000")
    a(f"v_cmp_eq_u32 vcc, 0, v{V_T + 1}")
    a(f"s_nop 1")
    a(f"v_cndmask_b32 v{V_T + 4}, v{V_T + 2}, v{V_T}, vcc")
    a("s_waitcnt vmcnt(0)")
    for kc in range(8):
        a("s_barrier")
        for ks in range(4 * kc, 4 * kc + 4):
            wread(ks, V_W + 4 * ks, True)
        a("s_waitcnt lgkmcnt(0)")
    a("s_barrier")
    extra = {0: 0, 1: 0, 2: 1, 3: 2}
    for t in range(4):
        a.label(f"L_proj_sp{t}")
        a(f"s_cmp_lg_u32 s{S_T0}, {t}")
        a(f"s_cbranch_scc1 L_proj_sp{t + 1}")
        for _ in range(extra[t]):
            a("s_barrier")
        for typ in ("T", "N"):
            if typ == "T":
                a(f"s_cmp_ge_u32 s{S_CB}, 4")
                a(f"s_cbranch_scc1 L_proj_spN{t}")
            else:
                a.label(f"L_proj_spN{t}")
            for ks in range(3):
                xread(t, ks, ks)
            for ks in range(32):
                if ks + 3 < 32:
                    xread(t, ks + 3, (ks + 3) & 3)
                    a("s_waitcnt lgkmcnt(3)")
                else:
                    a(f"s_waitcnt lgkmcnt({31 - ks})")
                mfma(typ, V_ACC, V_W + 4 * ks, V_XF + 4 * (ks & 3), ks == 0)
            a("s_nop 15")
            if typ == "T":
                pack(V_ACC, 0, V_PK)
                a(f"buffer_store_dwordx4 {vr(V_PK, 4)}, v{V_L16}, s[{R_WS}:{R_WS + 3}], s{S_DBASE} offen{STP}")
            else:
                pack(V_ACC, 0, V_PK)
                pack(V_ACC, 1, V_PK + 4)
                a(f"buffer_store_dwordx4 {vr(V_PK, 4)}, v{V_T + 4}, s[{R_WS}:{R_WS + 3}], s{S_DBASE} offen offset:1024{STP}")
                a(f"buffer_store_dwordx4 {vr(V_PK + 4, 4)}, v{V_T + 4}, s[{R_WS}:{R_WS + 3}], s{S_DBASE} offen offset:1280{STP}")
            a("s_endpgm")
    a.label("L_proj_sp4")
    a.label("L_proj_end")
    a("s_endpgm")
    return K, NV


def gen_attn(a, bias=40.0):
    K = "attn_kernel"
    kernel_begin(a, K)
    S_X, S_GW, S_WS = 4, 6, 8
    R_WS, R_X, R_GW = 12, 16, 20
    S_WAVE, S_HEAD, S_QT, S_KV = 24, 25, 26, 27
    S_T0, S_T1, S_T2 = 28, 29, 30
    S_KVH = 31
    S_MASK = 32
    S_IT = 34
    S_G, S_OMG = 35, 36
    S_SLOW = 38
    S_QOFF = 40
    S_WOA, S_WOB = 42, 44
    R_WO = 48
    V_LANE = 1
    V_L16 = 2
    V_A = 3
    V_T = 4
    V_QH, V_QL = 12, 16
    V_K = 20
    V_V = 28
    V_P = 36
    V_M = 44
    V_C = 45
    V_NM = 48
    V_S = 64
    V_O = 96
    NV = 112
    ABL = [x[6:] for x in sys.argv if x.startswith("--abl=")]

    a(f"s_cmp_ge_u32 s2, 256")
    a(f"s_cbranch_scc1 L_attn_end")
    stamp(a, 0)
    a(f"s_load_dwordx2 s[{S_WS}:{S_WS + 1}], s[0:1], 88")
    a(f"s_load_dwordx2 s[{S_X}:{S_X + 1}], s[0:1], 0")
    a(f"s_load_dwordx2 s[{S_GW}:{S_GW + 1}], s[0:1], 64")
    a(f"s_load_dwordx2 s[{S_WOA}:{S_WOA + 1}], s[0:1], 32")
    a(f"s_load_dwordx2 s[{S_WOB}:{S_WOB + 1}], s[0:1], 56")
    a(f"v_and_b32 v{V_LANE}, 63, v0")
    a(f"v_lshrrev_b32 v{V_T}, 6, v0")
    a(f"v_lshlrev_b32 v{V_L16}, 4, v{V_LANE}")
    a(f"v_readfirstlane_b32 s{S_WAVE}, v{V_T}")
    a(f"s_and_b32 s{S_T0}, s2, 7")
    a(f"s_lshr_b32 s{S_T1}, s2, 3")
    a(f"s_and_b32 s{S_T2}, s{S_T1}, 3")
    a(f"s_lshr_b32 s{S_T1}, s{S_T1}, 2")
    a(f"s_lshl_b32 s{S_T1}, s{S_T1}, 3")
    a(f"s_add_u32 s{S_HEAD}, s{S_T1}, s{S_T0}")
    a(f"s_lshl_b32 s{S_QT}, s{S_T2}, 4")
    a(f"s_add_u32 s{S_QT}, s{S_QT}, s{S_WAVE}")
    a(f"s_sub_u32 s{S_T0}, s{S_HEAD}, 31")
    a(f"s_cmp_lt_u32 s{S_HEAD}, 32")
    a(f"s_cselect_b32 s{S_KVH}, 0, s{S_T0}")
    a(f"s_lshl_b32 s{S_KV}, s{S_KVH}, 17")
    a(f"s_add_u32 s{S_KV}, s{S_KV}, {KV_OFF}")
    a(f"s_mov_b32 s{S_MASK}, 0x0000ffff")
    a(f"s_mov_b32 s{S_MASK + 1}, 0x0000ffff")
    a(f"s_lshl_b32 s{S_T0}, s{S_HEAD}, 16")
    a(f"s_lshl_b32 s{S_T1}, s{S_QT}, 10")
    a(f"s_add_u32 s{S_QOFF}, s{S_T0}, s{S_T1}")
    a(f"s_lshl_b32 s{S_T0}, s{S_WAVE}, 10")
    a(f"s_add_u32 s{S_T1}, s{S_T0}, s{S_KV}")
    a(f"s_waitcnt lgkmcnt(0)")
    srd(a, R_WS, S_WS, WS_SIZE)
    a(f"s_xor_b32 s{S_T2}, s{S_T0}, 1024")
    a(f"s_add_u32 s{S_IT}, s{S_T2}, s{S_KV}")
    a(f"s_mov_b32 m0, s{S_T0}")
    a(f"s_nop 0")
    a(f"buffer_load_dwordx4 v{V_L16}, s[{R_WS}:{R_WS + 3}], s{S_T1} offen lds")
    a(f"buffer_load_dwordx4 {vr(V_S, 4)}, v{V_L16}, s[{R_WS}:{R_WS + 3}], s{S_QOFF} offen")
    for i in range(1, 8):
        lds_s, glb_s = (S_T0, S_T1) if i % 2 == 0 else (S_T2, S_IT)
        a(f"s_add_u32 m0, s{lds_s}, {i * 16384}")
        a(f"s_add_u32 s{S_G}, s{glb_s}, {i * 16384}")
        a(f"buffer_load_dwordx4 v{V_L16}, s[{R_WS}:{R_WS + 3}], s{S_G} offen lds")
    a(f"s_and_b32 s{S_OMG}, s{S_WAVE}, 14")
    a(f"s_lshl_b32 s{S_OMG}, s{S_OMG}, 10")
    a(f"v_add_u32 v{V_M}, s{S_OMG}, v{V_L16}")
    a(f"s_and_b32 s{S_OMG}, s{S_WAVE}, 1")
    a(f"v_and_b32 v{V_T}, 27, v{V_LANE}")
    a(f"v_cmp_eq_u32 vcc, 16, v{V_T}")
    a(f"v_mov_b32 v{V_T + 1}, 0x3f803f80")
    a(f"s_nop 1")
    for i in range(8):
        a(f"v_cndmask_b32 v{V_V + i}, 0, v{V_T + 1}, vcc")
    for i in range(16):
        a(f"v_mov_b32 v{V_O + i}, 0")
    a(f"v_mov_b32 v{V_C}, {f32bits(C_SCALE):#x}")
    a(f"v_mov_b32 v{V_A}, v{V_L16}")
    def kconv(off, tmp):
        a(f"ds_read_b128 {vr(tmp, 4)}, v{V_M} offset:{off}")
        a(f"s_waitcnt lgkmcnt(0)")
        for i in range(4):
            a(f"v_lshlrev_b32 v{V_T}, 16, v{tmp + i}")
            a(f"v_and_b32 v{V_T + 1}, 0xffff0000, v{tmp + i}")
            a(f"v_max3_f32 v{V_QL}, abs(v{V_T}), abs(v{V_T + 1}), v{V_QL}")
            a(f"v_cvt_pkrtz_f16_f32 v{tmp + i}, v{V_T}, v{V_T + 1}")
        a(f"ds_write_b128 v{V_M}, {vr(tmp, 4)} offset:{off}")

    a(f"v_mov_b32 v{V_QL}, 0")
    a(f"s_waitcnt vmcnt(7)")
    a(f"s_cmp_lg_u32 s{S_OMG}, 0")
    a(f"s_cbranch_scc1 L_attn_nc0")
    kconv(0, V_S + 4)
    a.label("L_attn_nc0")
    a(f"v_mov_b32 v{V_T + 4}, 0")
    for i in range(4):
        q = V_S + i
        a(f"v_lshlrev_b32 v{V_T}, 16, v{q}")
        a(f"v_and_b32 v{V_T + 1}, 0xffff0000, v{q}")
        a(f"v_mul_f32 v{V_T}, v{V_C}, v{V_T}")
        a(f"v_mul_f32 v{V_T + 1}, v{V_C}, v{V_T + 1}")
        a(f"v_max3_f32 v{V_T + 4}, abs(v{V_T}), abs(v{V_T + 1}), v{V_T + 4}")
        a(f"v_cvt_f16_f32 v{V_T}, v{V_T}")
        a(f"v_cvt_f16_f32 v{V_T + 1}, v{V_T + 1}")
        a(f"v_pack_b32_f16 v{V_QH + i}, v{V_T}, v{V_T + 1}")
    a(f"v_mov_b32 v{V_T}, 0x477fe000")
    a(f"v_cmp_nle_f32 vcc, v{V_T + 4}, v{V_T}")
    a(f"s_mov_b64 s[{S_SLOW}:{S_SLOW + 1}], vcc")
    a(f"s_waitcnt lgkmcnt(0)")
    a(f"s_barrier")
    stamp(a, 1)

    def mf(d, A, B, c, ty="bf16"):
        a(f"v_mfma_f32_32x32x16_{ty} {vr(d, 16)}, {vr(A, 4)}, {vr(B, 4)}, {c}")

    def vread(dst, off):
        a(f"s_mov_b64 exec, s[{S_MASK}:{S_MASK + 1}]")
        a(f"ds_read_b128 {vr(dst, 4)}, v{V_A} offset:{off}")
        a(f"s_mov_b64 exec, -1")

    def tile_max(S, dst, tmp):
        a(f"v_max3_f32 v{dst}, v{S}, v{S + 1}, v{S + 2}")
        for i in range(3, 15, 2):
            a(f"v_max3_f32 v{dst}, v{dst}, v{S + i}, v{S + i + 1}")
        a(f"v_max_f32 v{dst}, v{dst}, v{S + 15}")
        a(f"v_mov_b32 v{tmp}, v{dst}")
        a(f"s_nop 1")
        a(f"v_permlane32_swap_b32 v{dst}, v{tmp}")
        a(f"s_nop 1")
        a(f"v_max_f32 v{dst}, v{dst}, v{tmp}")

    a(f"ds_read_b128 {vr(V_K, 4)}, v{V_A} offset:0")
    a(f"ds_read_b128 {vr(V_K + 4, 4)}, v{V_A} offset:2048")
    vread(V_V, 1024)
    a(f"s_waitcnt lgkmcnt(2)")
    mf(V_NM, V_K, V_QH, "0", "f16")
    a("s_nop 15")
    a("s_nop 3")
    S0 = V_S
    tile_max(V_NM, V_T, V_T + 1)
    a(f"v_sub_f32 v{V_T}, {f32bits(-bias):#x}, v{V_T}")
    for i in range(16):
        a(f"v_add_f32 v{S0 + i}, v{V_NM + i}, v{V_T}")
    for i in range(16):
        a(f"v_mov_b32 v{V_NM + i}, v{V_T}")
    for i in range(4, 8):
        a(f"v_mov_b32 v{V_P + i}, 0")
    a(f"s_mov_b32 s{S_IT}, 0")

    def ex(A, i):
        if "exp" not in ABL:
            a(f"v_exp_f32 v{A + i}, v{A + i}")

    def cv(A, i):
        if "cvt" not in ABL:
            a(f"v_cvt_pk_bf16_f32 v{V_P + i}, v{A + 2 * i}, v{A + 2 * i + 1}")

    def sub_iter(par):
        A = V_S + 16 * par
        B = V_S + 16 * (par ^ 1)
        Kn = V_K + 4 * (par ^ 1)
        Kp = V_K + 4 * par
        base = 2048 * par
        a(f"s_waitcnt lgkmcnt(1)")
        mf(B, Kn, V_QH, vr(V_NM, 16), "f16")
        a(f"ds_read_b128 {vr(Kp, 4)}, v{V_A} offset:{base + 4096}")
        for i in range(0, 5):
            ex(A, i)
        mf(V_O, V_V + 4, V_P + 4, vr(V_O, 16))
        vread(V_V + 4, base + 1024 + 256)
        for i in range(5, 8):
            ex(A, i)
        for i in range(0, 4):
            cv(A, i)
        for i in range(8, 10):
            ex(A, i)
        a(f"s_waitcnt lgkmcnt(2)")
        mf(V_O, V_V, V_P, vr(V_O, 16))
        vread(V_V, base + 2048 + 1024)
        for i in range(10, 16):
            ex(A, i)
        for i in range(4, 8):
            cv(A, i)

    ladder = [(0, 3), (40, 2), (56, 1), (60, 0)]
    for x in sys.argv:
        if x.startswith("--ladder="):
            bs = [int(v) for v in x.split("=")[1].split(",")]
            ladder = [(0, 3)] + [(b, 2 - i) for i, b in enumerate(bs)]
    a("s_setprio 3")
    a.label("L_attn_loop")
    for u in range(4):
        for (t0, pr) in ladder:
            if t0 > 0 and (t0 % 8) // 2 == u:
                a(f"s_cmp_eq_u32 s{S_IT}, {t0 // 8}")
                a(f"s_cbranch_scc0 L_attn_np{t0}")
                a(f"s_setprio {pr}")
                a.label(f"L_attn_np{t0}")
        if u == 2:
            a(f"s_cmp_eq_u32 s{S_IT}, 0")
            a(f"s_cbranch_scc0 L_attn_nobar")
            a(f"s_waitcnt vmcnt(0) lgkmcnt(0)")
            a(f"s_cmp_lg_u32 s{S_OMG}, 0")
            a(f"s_cbranch_scc1 L_attn_c_odd")
            for i in (2, 4, 6):
                kconv(i * 16384 if i * 16384 < 65536 else 0, V_T + 4) if False else None
            a(f"v_add_u32 v{V_M}, 0x8000, v{V_M}")
            for i in range(3):
                kconv(0, V_T + 4)
                a(f"v_add_u32 v{V_M}, 0x8000, v{V_M}")
            a(f"s_branch L_attn_c_done")
            a.label("L_attn_c_odd")
            a(f"v_add_u32 v{V_M}, 0x4000, v{V_M}")
            for i in range(4):
                kconv(0, V_T + 4)
                a(f"v_add_u32 v{V_M}, 0x8000, v{V_M}")
            a.label("L_attn_c_done")
            a(f"v_mov_b32 v{V_T}, 0x477fe000")
            a(f"v_cmp_nle_f32 vcc, v{V_QL}, v{V_T}")
            a(f"s_cmp_lg_u64 vcc, 0")
            a(f"s_cselect_b32 s{S_T0}, 1, 0")
            a(f"s_lshl_b32 s{S_T1}, s{S_WAVE}, 2")
            a(f"s_add_u32 s{S_T1}, s{S_T1}, {131072 + 8192}")
            a(f"v_mov_b32 v{V_T}, s{S_T0}")
            a(f"v_mov_b32 v{V_T + 1}, s{S_T1}")
            a(f"ds_write_b32 v{V_T + 1}, v{V_T}")
            a(f"s_waitcnt lgkmcnt(0)")
            a(f"s_barrier")
            if "--nopf" not in sys.argv:
                a(f"s_lshr_b32 s{S_T0}, s2, 3")
                a(f"s_lshl_b32 s{S_T0}, s{S_T0}, 4")
                a(f"s_add_u32 s{S_T0}, s{S_T0}, s{S_WAVE}")
                a(f"s_cmp_lt_u32 s{S_T0}, 256")
                a(f"s_cselect_b32 s{R_WO}, s{S_WOA}, s{S_WOB}")
                a(f"s_cselect_b32 s{S_T1}, s{S_WOA + 1}, s{S_WOB + 1}")
                a(f"s_and_b32 s{R_WO + 1}, s{S_T1}, 0xffff")
                a(f"s_mov_b32 s{R_WO + 2}, {512 * 1024}")
                a(f"s_mov_b32 s{R_WO + 3}, 0x00020000")
                a(f"s_and_b32 s{S_T0}, s{S_T0}, 255")
                a(f"s_lshl_b32 s{S_T0}, s{S_T0}, 11")
                a(f"buffer_load_dwordx4 {vr(V_QL, 4)}, v{V_L16}, s[{R_WO}:{R_WO + 3}], s{S_T0} offen")
                a(f"buffer_load_dwordx4 {vr(V_QL, 4)}, v{V_L16}, s[{R_WO}:{R_WO + 3}], s{S_T0} offen offset:1024")
            a.label("L_attn_nobar")
        sub_iter(0)
        sub_iter(1)
        a(f"v_add_u32 v{V_A}, 0x1000, v{V_A}")
    a(f"s_add_u32 s{S_IT}, s{S_IT}, 1")
    a(f"s_cmp_lt_u32 s{S_IT}, 8")
    a(f"s_cbranch_scc1 L_attn_loop")
    a(f"s_waitcnt lgkmcnt(0)")
    stamp(a, 2)
    mf(V_O, V_V + 4, V_P + 4, vr(V_O, 16))
    a("s_nop 15")
    a("s_nop 3")
    a(f"v_and_b32 v{V_T}, 15, v{V_LANE}")
    a(f"v_lshlrev_b32 v{V_T}, 2, v{V_T}")
    a(f"v_add_u32 v{V_T}, {131072 + 8192}, v{V_T}")
    a(f"ds_read_b32 v{V_T + 1}, v{V_T}")
    a(f"s_waitcnt lgkmcnt(0)")
    a(f"v_cmp_ne_u32 vcc, 0, v{V_T + 1}")
    a(f"s_or_b64 s[{S_SLOW}:{S_SLOW + 1}], s[{S_SLOW}:{S_SLOW + 1}], vcc")
    a(f"v_mov_b32 v{V_T}, {f32bits(2.0 ** 120):#x}")
    a(f"v_cmp_nlt_f32 vcc, v{V_O + 8}, v{V_T}")
    a(f"s_or_b64 s[{S_SLOW}:{S_SLOW + 1}], s[{S_SLOW}:{S_SLOW + 1}], vcc")
    for i in range(8):
        a(f"v_cmp_nlt_f32 vcc, abs(v{V_O + i}), v{V_T}")
        a(f"s_or_b64 s[{S_SLOW}:{S_SLOW + 1}], s[{S_SLOW}:{S_SLOW + 1}], vcc")
    if "--forceslow" in sys.argv:
        a(f"s_branch L_attn_slow")
    a(f"s_cmp_eq_u64 s[{S_SLOW}:{S_SLOW + 1}], 0")
    a(f"s_cbranch_scc0 L_attn_slow")
    a.label("L_attn_epi")
    a(f"v_rcp_f32 v{V_T}, v{V_O + 8}")
    a("s_nop 0")
    for i in range(8):
        a(f"v_mul_f32 v{V_O + i}, v{V_O + i}, v{V_T}")
    for i in range(4):
        a(f"v_cvt_pk_bf16_f32 v{V_P + i}, v{V_O + 2 * i}, v{V_O + 2 * i + 1}")
    a(f"s_add_u32 s{S_T0}, s{S_QOFF}, {OF_OFF}")
    a(f"buffer_store_dwordx4 {vr(V_P, 4)}, v{V_L16}, s[{R_WS}:{R_WS + 3}], s{S_T0} offen{STP}")
    stamp(a, 3)
    stamp_store(a, 0, S_WAVE, R_WS, V_T)
    a.label("L_attn_end")
    a("s_endpgm")

    a.label("L_attn_slow")
    a("s_setprio 0")
    a(f"buffer_load_dwordx4 {vr(V_S, 4)}, v{V_L16}, s[{R_WS}:{R_WS + 3}], s{S_QOFF} offen")
    a(f"v_mov_b32 v{V_A}, v{V_L16}")
    for i in range(16):
        a(f"v_mov_b32 v{V_O + i}, 0")
    a(f"v_mov_b32 v{V_M}, 0xff7fffff")
    a(f"s_mov_b32 s{S_IT}, 0")
    a(f"s_mov_b32 s{S_T2}, s{S_KV}")
    a(f"s_waitcnt vmcnt(0)")
    for i in range(4):
        q = V_S + i
        a(f"v_lshlrev_b32 v{V_T}, 16, v{q}")
        a(f"v_and_b32 v{V_T + 1}, 0xffff0000, v{q}")
        a(f"v_mul_f32 v{V_T}, v{V_C}, v{V_T}")
        a(f"v_mul_f32 v{V_T + 1}, v{V_C}, v{V_T + 1}")
        a(f"v_cvt_pk_bf16_f32 v{V_QH + i}, v{V_T}, v{V_T + 1}")
        a(f"v_lshlrev_b32 v{V_T + 2}, 16, v{V_QH + i}")
        a(f"v_and_b32 v{V_T + 3}, 0xffff0000, v{V_QH + i}")
        a(f"v_sub_f32 v{V_T}, v{V_T}, v{V_T + 2}")
        a(f"v_sub_f32 v{V_T + 1}, v{V_T + 1}, v{V_T + 3}")
        a(f"v_cvt_pk_bf16_f32 v{V_QL + i}, v{V_T}, v{V_T + 1}")
    a.label("L_attn_slow_loop")
    a(f"buffer_load_dwordx4 {vr(V_K, 4)}, v{V_L16}, s[{R_WS}:{R_WS + 3}], s{S_T2} offen")
    vread(V_V, 1024)
    vread(V_V + 4, 1024 + 256)
    a(f"s_waitcnt vmcnt(0) lgkmcnt(0)")
    mf(S0, V_K, V_QH, "0")
    mf(S0, V_K, V_QL, vr(S0, 16))
    a("s_nop 15")
    a("s_nop 3")
    tile_max(S0, V_T, V_T + 1)
    a(f"v_max_f32 v{V_T}, v{V_T}, v{V_M}")
    a(f"v_sub_f32 v{V_T + 1}, v{V_M}, v{V_T}")
    a(f"v_exp_f32 v{V_T + 1}, v{V_T + 1}")
    a(f"v_mov_b32 v{V_M}, v{V_T}")
    for i in range(16):
        a(f"v_mul_f32 v{V_O + i}, v{V_O + i}, v{V_T + 1}")
    for i in range(16):
        a(f"v_sub_f32 v{S0 + i}, v{S0 + i}, v{V_M}")
        a(f"v_exp_f32 v{S0 + i}, v{S0 + i}")
    a("s_nop 0")
    for i in range(8):
        a(f"v_cvt_pk_bf16_f32 v{V_P + i}, v{S0 + 2 * i}, v{S0 + 2 * i + 1}")
    a("s_nop 1")
    mf(V_O, V_V, V_P, vr(V_O, 16))
    mf(V_O, V_V + 4, V_P + 4, vr(V_O, 16))
    a("s_nop 15")
    a("s_nop 3")
    a(f"v_add_u32 v{V_A}, 0x800, v{V_A}")
    a(f"s_add_u32 s{S_T2}, s{S_T2}, 2048")
    a(f"s_add_u32 s{S_IT}, s{S_IT}, 1")
    a(f"s_cmp_lt_u32 s{S_IT}, 64")
    a(f"s_cbranch_scc1 L_attn_slow_loop")
    a(f"s_branch L_attn_epi")
    return K, NV


def gen_out(a):
    K = "out_kernel"
    kernel_begin(a, K)
    S_WOA, S_WOB, S_OUT, S_WS = 4, 6, 8, 10
    R_WA, R_OUT, R_WS = 12, 20, 24
    S_TB, S_CB, S_WAVE, S_TT, S_KH, S_BR = 28, 29, 30, 31, 32, 33
    S_T0, S_T1, S_T2 = 34, 35, 36
    S_OB = 37
    S_WB = 38
    S_M0 = 39
    S_Q = 40
    V_LANE, V_L16, V_WOFF, V_WA = 1, 2, 3, 4
    V_T = 5
    V_G, V_OMG = 12, 13
    V_XA = 14
    V_WA1 = 15
    V_WF = 16
    V_ACC = 32
    V_OFR = 64
    NV = 128

    a(f"s_cmp_ge_u32 s2, 256")
    a(f"s_cbranch_scc1 L_out_end")
    stamp(a, 0)
    a(f"s_load_dwordx2 s[{S_WS}:{S_WS + 1}], s[0:1], 88")
    a(f"s_load_dwordx2 s[{S_WOA}:{S_WOA + 1}], s[0:1], 32")
    a(f"s_load_dwordx2 s[{S_WOB}:{S_WOB + 1}], s[0:1], 56")
    a(f"s_load_dwordx2 s[{S_OUT}:{S_OUT + 1}], s[0:1], 72")
    a(f"v_and_b32 v{V_LANE}, 63, v0")
    a(f"v_lshrrev_b32 v{V_T}, 6, v0")
    a(f"v_lshlrev_b32 v{V_L16}, 4, v{V_LANE}")
    a(f"v_readfirstlane_b32 s{S_WAVE}, v{V_T}")
    a(f"s_and_b32 s{S_T0}, s2, 7")
    a(f"s_lshl_b32 s{S_T0}, s{S_T0}, 2")
    a(f"s_lshr_b32 s{S_T1}, s2, 3")
    a(f"s_and_b32 s{S_T1}, s{S_T1}, 3")
    a(f"s_add_u32 s{S_TB}, s{S_T0}, s{S_T1}")
    a(f"s_lshr_b32 s{S_CB}, s2, 5")
    a(f"s_and_b32 s{S_TT}, s{S_WAVE}, 1")
    a(f"s_lshr_b32 s{S_Q}, s{S_WAVE}, 1")
    a(f"s_and_b32 s{S_KH}, s{S_Q}, 1")
    a(f"s_lshr_b32 s{S_BR}, s{S_WAVE}, 2")
    a(f"v_lshrrev_b32 v{V_T}, 3, v{V_LANE}")
    a(f"v_lshlrev_b32 v{V_T + 1}, 10, v{V_T}")
    a(f"v_lshrrev_b32 v{V_T}, 1, v{V_T}")
    a(f"v_and_b32 v{V_T}, 1, v{V_T}")
    a(f"v_lshlrev_b32 v{V_T}, 2, v{V_T}")
    a(f"v_and_b32 v{V_T + 2}, 7, v{V_LANE}")
    a(f"v_xor_b32 v{V_T}, v{V_T}, v{V_T + 2}")
    a(f"v_lshlrev_b32 v{V_T}, 4, v{V_T}")
    a(f"v_add_u32 v{V_WOFF}, v{V_T}, v{V_T + 1}")
    a(f"s_lshl_b32 s{S_T0}, s{S_TB}, 1")
    a(f"s_add_u32 s{S_T0}, s{S_T0}, s{S_TT}")
    a(f"s_lshl_b32 s{S_OB}, s{S_T0}, 10")
    a(f"s_lshl_b32 s{S_T1}, s{S_Q}, 20")
    a(f"s_add_u32 s{S_OB}, s{S_OB}, s{S_T1}")
    a(f"s_add_u32 s{S_OB}, s{S_OB}, {OF_OFF}")
    a(f"s_lshl_b32 s{S_WB}, s{S_CB}, 7")
    a(f"s_lshl_b32 s{S_T0}, s{S_KH}, 18")
    a(f"s_add_u32 s{S_WB}, s{S_WB}, s{S_T0}")
    a(f"s_lshl_b32 s{S_T0}, s{S_TT}, 15")
    a(f"s_add_u32 s{S_WB}, s{S_WB}, s{S_T0}")
    a(f"s_lshl_b32 s{S_M0}, s{S_Q}, 15")
    a(f"s_lshl_b32 s{S_T0}, s{S_TT}, 12")
    a(f"s_add_u32 s{S_M0}, s{S_M0}, s{S_T0}")
    a(f"s_waitcnt lgkmcnt(0)")
    srd(a, R_WS, S_WS, WS_SIZE)
    a(f"s_cmp_eq_u32 s{S_BR}, 0")
    a(f"s_cselect_b32 s{R_WA}, s{S_WOA}, s{S_WOB}")
    a(f"s_cselect_b32 s{S_T0}, s{S_WOA + 1}, s{S_WOB + 1}")
    a(f"s_and_b32 s{R_WA + 1}, s{S_T0}, 0xffff")
    a(f"s_mov_b32 s{R_WA + 2}, {512 * 1024}")
    a(f"s_mov_b32 s{R_WA + 3}, 0x00020000")

    queue = []

    def dma_w(st):
        for q in range(4):
            a(f"s_add_u32 m0, s{S_M0}, {st * 8192 + q * 1024}")
            a(f"s_add_u32 s{S_T0}, s{S_WB}, {st * 65536 + q * 8192}")
            a(f"buffer_load_dwordx4 v{V_WOFF}, s[{R_WA}:{R_WA + 3}], s{S_T0} offen lds")
            queue.append(("W", st))

    def load_o(st):
        for s in range(4):
            hd = st * 4 + s
            a(f"s_add_u32 s{S_T0}, s{S_OB}, {hd * 65536}")
            a(f"buffer_load_dwordx4 {vr(V_OFR + 4 * hd, 4)}, v{V_L16}, s[{R_WS}:{R_WS + 3}], s{S_T0} offen")
            queue.append(("O", st))

    def wait_for(st):
        idx = max(i for i, (k, s) in enumerate(queue) if s == st and k in ("W", "O"))
        n = len(queue) - 1 - idx
        a(f"s_waitcnt vmcnt({n})")
        del queue[: idx + 1]

    for st in range(4):
        load_o(st)
        dma_w(st)
    a(f"v_and_b32 v{V_T}, 31, v{V_LANE}")
    a(f"v_lshlrev_b32 v{V_T}, 2, v{V_T}")
    a(f"s_lshl_b32 s{S_T0}, s{S_TB}, 1")
    a(f"s_add_u32 s{S_T0}, s{S_T0}, s{S_TT}")
    a(f"s_lshl_b32 s{S_T0}, s{S_T0}, 7")
    a(f"s_add_u32 s{S_T0}, s{S_T0}, {G_OFF}")
    a(f"buffer_load_dword v{V_G}, v{V_T}, s[{R_WS}:{R_WS + 3}], s{S_T0} offen")
    a(f"s_add_u32 s{S_T0}, s{S_T0}, 8192")
    a(f"buffer_load_dword v{V_OMG}, v{V_T}, s[{R_WS}:{R_WS + 3}], s{S_T0} offen")
    queue.append(("G", -1))
    queue.append(("G", -1))
    srd(a, R_OUT, S_OUT, 2048 * 1024)
    a(f"v_lshrrev_b32 v{V_T}, 5, v{V_LANE}")
    a(f"v_lshrrev_b32 v{V_T + 1}, 2, v{V_LANE}")
    a(f"v_and_b32 v{V_T + 1}, 3, v{V_T + 1}")
    a(f"v_lshl_add_u32 v{V_T}, v{V_T}, 2, v{V_T + 1}")
    a(f"v_lshlrev_b32 v{V_T}, 7, v{V_T}")
    a(f"v_lshrrev_b32 v{V_T + 1}, 1, v{V_T + 1}")
    a(f"v_lshlrev_b32 v{V_T + 1}, 6, v{V_T + 1}")
    a(f"v_add_u32 v{V_T}, v{V_T}, v{V_T + 1}")
    a(f"v_lshrrev_b32 v{V_T + 1}, 4, v{V_LANE}")
    a(f"v_and_b32 v{V_T + 1}, 1, v{V_T + 1}")
    a(f"v_lshlrev_b32 v{V_T + 1}, 5, v{V_T + 1}")
    a(f"v_add_u32 v{V_T}, v{V_T}, v{V_T + 1}")
    a(f"v_and_b32 v{V_T + 1}, 3, v{V_LANE}")
    a(f"v_lshlrev_b32 v{V_T + 1}, 3, v{V_T + 1}")
    a(f"v_add_u32 v{V_T}, v{V_T}, v{V_T + 1}")
    a(f"s_lshl_b32 s{S_T0}, s{S_Q}, 15")
    a(f"v_add_u32 v{V_WA}, s{S_T0}, v{V_T}")
    a(f"v_xor_b32 v{V_WA1}, 64, v{V_WA}")
    a(f"s_lshl_b32 s{S_T0}, s{S_WAVE}, 13")
    a(f"v_add_u32 v{V_XA}, s{S_T0}, v{V_L16}")
    for i in range(32):
        a(f"v_mov_b32 v{V_ACC + i}, 0")
    nstep = 0
    for st in range(4):
        wait_for(st)
        a("s_barrier")
        if st == 0:
            stamp(a, 1)

        def rd(s, wb):
            off = st * 8192 + s * 2048
            for ct in range(2):
                wa = V_WA if ct == 0 else V_WA1
                a(f"ds_read_b64_tr_b16 {vr(V_WF + 8 * wb + 4 * ct, 2)}, v{wa} offset:{off}")
                a(f"ds_read_b64_tr_b16 {vr(V_WF + 8 * wb + 4 * ct + 2, 2)}, v{wa} offset:{off + 1024}")
        rd(0, 0)
        for s in range(4):
            if s < 3:
                rd(s + 1, (s + 1) & 1)
                a("s_waitcnt lgkmcnt(4)")
            else:
                a("s_waitcnt lgkmcnt(0)")
            for ct in range(2):
                acc = vr(V_ACC + 16 * ct, 16)
                a(f"v_mfma_f32_32x32x16_bf16 {acc}, {vr(V_WF + 8 * (s & 1) + 4 * ct, 4)}, {vr(V_OFR + 4 * (st * 4 + s), 4)}, {acc}")
    stamp(a, 2)
    a("s_waitcnt vmcnt(0)")
    a("s_barrier")
    a("s_nop 15")
    for q in range(8):
        a(f"ds_write_b128 v{V_XA}, {vr(V_ACC + 4 * q, 4)} offset:{q * 1024}")
    a(f"v_and_b32 v{V_T}, 31, v{V_LANE}")
    a(f"v_lshlrev_b32 v{V_T}, 10, v{V_T}")
    a(f"v_lshrrev_b32 v{V_T + 1}, 5, v{V_LANE}")
    a(f"v_lshlrev_b32 v{V_T + 1}, 3, v{V_T + 1}")
    a(f"v_add_u32 v{V_T}, v{V_T}, v{V_T + 1}")
    a(f"s_lshl_b32 s{S_T0}, s{S_TB}, 1")
    a(f"s_add_u32 s{S_T0}, s{S_T0}, s{S_TT}")
    a(f"s_lshl_b32 s{S_T0}, s{S_T0}, 15")
    a(f"s_lshl_b32 s{S_T1}, s{S_CB}, 7")
    a(f"s_add_u32 s{S_T0}, s{S_T0}, s{S_T1}")
    a(f"s_lshl_b32 s{S_T1}, s{S_Q}, 5")
    a(f"s_add_u32 s{S_T0}, s{S_T0}, s{S_T1}")
    a(f"s_lshl_b32 s{S_T1}, s{S_TT}, 13")
    a(f"s_lshl_b32 s{S_T2}, s{S_Q}, 11")
    a(f"s_add_u32 s{S_T1}, s{S_T1}, s{S_T2}")
    a(f"v_add_u32 v{V_XA}, s{S_T1}, v{V_L16}")
    a("s_waitcnt lgkmcnt(0)")
    a("s_barrier")
    for qq in range(4):
        for h in range(2):
            a(f"ds_read_b128 {vr(V_OFR + 8 * qq + 4 * h, 4)}, v{V_XA} offset:{qq * 16384 + h * 1024}")
    a("s_waitcnt lgkmcnt(0)")
    for i in range(8):
        A, B = V_OFR + i, V_OFR + 16 + i
        a(f"v_add_f32 v{A}, v{A}, v{A + 8}")
        a(f"v_add_f32 v{B}, v{B}, v{B + 8}")
        a(f"v_cvt_pk_bf16_f32 v{A}, 0, v{A}")
        a(f"v_cvt_pk_bf16_f32 v{B}, 0, v{B}")
        a(f"v_mul_f32 v{A}, v{V_G}, v{A}")
        a(f"v_mul_f32 v{B}, v{V_OMG}, v{B}")
        a(f"v_cvt_pk_bf16_f32 v{A}, 0, v{A}")
        a(f"v_cvt_pk_bf16_f32 v{B}, 0, v{B}")
        a(f"v_add_f32 v{A}, v{A}, v{B}")
    for h in range(2):
        d = V_ACC + 2 * h
        b = V_OFR + 4 * h
        a(f"v_cvt_pk_bf16_f32 v{d}, v{b}, v{b + 1}")
        a(f"v_cvt_pk_bf16_f32 v{d + 1}, v{b + 2}, v{b + 3}")
        a(f"buffer_store_dwordx2 {vr(d, 2)}, v{V_T}, s[{R_OUT}:{R_OUT + 3}], s{S_T0} offen offset:{16 * h}")
    if STAMP:
        a("s_waitcnt vmcnt(0)")
    stamp(a, 3)
    stamp_store(a, 2, S_WAVE, R_WS, V_T)
    a.label("L_out_end")
    a("s_endpgm")
    return K, NV


def main():
    out = [x for x in sys.argv[1:] if not x.startswith("--")]
    a = Asm()
    a.raw("; @launch kernel=proj_kernel grid=(256,1,1) block=(320,1,1) lds=147456")
    a.raw("; @launch kernel=attn_kernel grid=(256,1,1) block=(1024,1,1) lds=140288")
    a.raw("; @launch kernel=out_kernel grid=(256,1,1) block=(512,1,1) lds=131072")
    a.raw('.amdgcn_target "amdgcn-amd-amdhsa--gfx950"')
    ks = [gen_proj(a), gen_attn(a), gen_out(a)]
    for k, nv in ks:
        kernel_desc(a, k, nv)
    path = out[0] if out else f"cdna_kernels/{NAME}.s"
    open(path, "w").write(a.text())
    print("wrote", path, len(a.lines), "lines")


if __name__ == "__main__":
    main()
```

```python
import sys, struct

NAME = "gated_mix__grouped_kv_mqa__mha_block__prompt"

QF_OFF = 0
KV_OFF = 4 << 20
OF_OFF = 9 << 20
G_OFF = 13 << 20
KB_OFF = 16 << 20
FL_OFF = 13 * (1 << 20) + 65536
WS_SIZE = 20 << 20
ST_OFF = 14 << 20

C_SCALE = 0.25 * 1.4426950408889634


OSTP = " sc0 sc1" if "--outwt" in sys.argv else ""


def f32bits(x):
    return struct.unpack("<I", struct.pack("<f", x))[0]


class Asm:
    def __init__(self):
        self.lines = []

    def __call__(self, s):
        for ln in s.strip("\n").split("\n"):
            self.lines.append("    " + ln.strip())

    def label(self, s):
        self.lines.append(s + ":")

    def raw(self, s):
        self.lines.append(s)

    def text(self):
        return "\n".join(self.lines) + "\n"


def vr(b, n=1):
    return f"v{b}" if n == 1 else f"v[{b}:{b + n - 1}]"


def sr(b, n=1):
    return f"s{b}" if n == 1 else f"s[{b}:{b + n - 1}]"


def srd(a, d, base, nbytes):
    a(f"s_mov_b32 s{d}, s{base}")
    a(f"s_and_b32 s{d + 1}, s{base + 1}, 0xffff")
    a(f"s_mov_b32 s{d + 2}, {nbytes}")
    a(f"s_mov_b32 s{d + 3}, 0x00020000")


STAMP = "--stamp" in sys.argv
STP = " sc0 sc1"
for _x in sys.argv:
    if _x.startswith("--stp="):
        STP = " " + _x[6:].replace("+", " ")


def stamp(a, i):
    if STAMP:
        a(f"s_memtime s[{60 + 4 * i}:{61 + 4 * i}]")
        a(f"s_memrealtime s[{62 + 4 * i}:{63 + 4 * i}]")
        a(f"s_waitcnt lgkmcnt(0)")


def stamp_store(a, region, s_wave, r_ws, vt, nw=16):
    if not STAMP:
        return
    a(f"s_mul_i32 s80, s2, {nw}")
    a(f"s_add_u32 s80, s80, s{s_wave}")
    a(f"s_lshl_b32 s80, s80, 6")
    a(f"s_add_u32 s80, s80, {ST_OFF + region * 262144}")
    a(f"v_mov_b32 v{vt + 1}, 0")
    a(f"s_mov_b64 exec, 1")
    for i in range(16):
        a(f"v_mov_b32 v{vt}, s{60 + i}")
        a(f"buffer_store_dword v{vt}, v{vt + 1}, s[{r_ws}:{r_ws + 3}], s80 offen offset:{4 * i}")
    a(f"s_mov_b64 exec, -1")


def kernel_begin(a, name):
    a.raw(".text")
    a.raw(f".globl {name}")
    a.raw(".p2align 8")
    a.raw(f".type {name},@function")
    a.label(name)


def kernel_desc(a, name, nvgpr, nsgpr=102):
    acc = (nvgpr + 3) // 4 * 4
    a.raw('.section .rodata,"a"')
    a.raw(".p2align 6")
    a.raw(f".amdhsa_kernel {name}")
    a.raw(f"  .amdhsa_next_free_vgpr {nvgpr}")
    a.raw(f"  .amdhsa_next_free_sgpr {nsgpr}")
    a.raw(f"  .amdhsa_accum_offset {acc}")
    a.raw("  .amdhsa_group_segment_fixed_size 0")
    a.raw("  .amdhsa_kernarg_size 96")
    a.raw("  .amdhsa_user_sgpr_count 2")
    a.raw("  .amdhsa_user_sgpr_kernarg_segment_ptr 1")
    a.raw("  .amdhsa_system_sgpr_workgroup_id_x 1")
    a.raw(".end_amdhsa_kernel")


def gate_row_code(a, vx, vg, vt):
    a(f"v_mov_b32 v{vt + 4}, 0")
    for i in range(4):
        x, g = vx + i, vg + i
        a(f"v_lshlrev_b32 v{vt}, 16, v{x}")
        a(f"v_and_b32 v{vt + 1}, 0xffff0000, v{x}")
        a(f"v_lshlrev_b32 v{vt + 2}, 16, v{g}")
        a(f"v_and_b32 v{vt + 3}, 0xffff0000, v{g}")
        a(f"v_mul_f32 v{vt}, v{vt}, v{vt + 2}")
        a(f"v_mul_f32 v{vt + 1}, v{vt + 1}, v{vt + 3}")
        a(f"v_cvt_pk_bf16_f32 v{vt}, v{vt}, v{vt + 1}")
        a(f"v_lshlrev_b32 v{vt + 1}, 16, v{vt}")
        a(f"v_and_b32 v{vt}, 0xffff0000, v{vt}")
        a(f"v_add_f32 v{vt + 4}, v{vt + 4}, v{vt + 1}")
        a(f"v_add_f32 v{vt + 4}, v{vt + 4}, v{vt}")
    for ctrl in ("quad_perm:[1,0,3,2]", "quad_perm:[2,3,0,1]", "row_half_mirror", "row_mirror"):
        a(f"s_nop 1")
        a(f"v_add_f32_dpp v{vt}, v{vt + 4}, v{vt + 4} {ctrl} row_mask:0xf bank_mask:0xf")
        a(f"v_mov_b32 v{vt + 4}, v{vt}")
    a(f"s_nop 1")
    a(f"v_permlane16_swap_b32 v{vt}, v{vt + 4}")
    a(f"s_nop 1")
    a(f"v_add_f32 v{vt + 4}, v{vt}, v{vt + 4}")
    a(f"v_mov_b32 v{vt}, v{vt + 4}")
    a(f"s_nop 1")
    a(f"v_permlane32_swap_b32 v{vt}, v{vt + 4}")
    a(f"s_nop 1")
    a(f"v_add_f32 v{vt}, v{vt}, v{vt + 4}")
    a(f"v_cvt_pk_bf16_f32 v{vt}, 0, v{vt}")
    a(f"v_mul_f32 v{vt}, {f32bits(-1.4426950408889634):#x}, v{vt}")
    a(f"v_exp_f32 v{vt}, v{vt}")
    a(f"s_nop 0")
    a(f"v_add_f32 v{vt}, 1.0, v{vt}")
    a(f"v_rcp_f32 v{vt}, v{vt}")
    a(f"s_nop 0")
    a(f"v_cvt_pk_bf16_f32 v{vt}, 0, v{vt}")
    a(f"v_sub_f32 v{vt + 1}, 1.0, v{vt}")
    a(f"v_cvt_pk_bf16_f32 v{vt + 1}, 0, v{vt + 1}")


class VQ:
    def __init__(self, a):
        self.a = a
        self.q = []

    def push(self, tag):
        self.q.append(tag)

    def wait(self, *tags):
        idx = max([i for i, t in enumerate(self.q) if t in tags], default=-1)
        if idx < 0:
            return
        n = len(self.q) - 1 - idx
        assert n <= 63
        self.a(f"s_waitcnt vmcnt({n})")
        del self.q[: idx + 1]


def gen_proj(a):
    K = "proj_kernel"
    kernel_begin(a, K)
    S_X, S_WQ, S_WK, S_WV, S_WQKV, S_WS = 4, 6, 8, 10, 12, 14
    R_X, R_W, R_WS, R_GW = 16, 20, 24, 28
    S_TB, S_CB, S_WAVE = 32, 33, 34
    S_XROW = 35
    S_WROW = 36
    S_PITCH = 37
    S_T0, S_T1, S_T2, S_T3 = 38, 39, 40, 41
    S_M0 = 42
    S_M0X = 43
    S_P4 = 44
    S_P64 = 45
    S_DBASE, S_HSTR, S_TSTR = 46, 47, 48
    S_GW = 50
    V_LANE, V_L16, V_WOFF, V_WA = 1, 2, 3, 4
    V_XA = 5
    V_XB = 13
    V_T = 21
    V_XF = 28
    V_PK = 44
    V_ACC = 52
    V_W = 84
    NV = 212
    SPW = 131072
    XBASE = [65536, 98304, 0, 32768]

    a(f"s_cmp_ge_u32 s2, 256")
    a(f"s_cbranch_scc1 L_proj_end")
    stamp(a, 0)
    a(f"s_load_dwordx8 s[4:11], s[0:1], 0")
    a(f"s_load_dwordx2 s[12:13], s[0:1], 48")
    a(f"s_load_dwordx2 s[14:15], s[0:1], 88")
    a(f"s_load_dwordx2 s[{S_GW}:{S_GW + 1}], s[0:1], 64")
    a(f"v_and_b32 v{V_LANE}, 63, v0")
    a(f"v_lshrrev_b32 v{V_T}, 6, v0")
    a(f"v_lshlrev_b32 v{V_L16}, 4, v{V_LANE}")
    a(f"s_and_b32 s{S_T0}, s2, 1")
    a(f"s_lshl_b32 s{S_T0}, s{S_T0}, 3")
    a(f"s_lshr_b32 s{S_T1}, s2, 3")
    a(f"s_and_b32 s{S_T2}, s{S_T1}, 7")
    a(f"s_add_u32 s{S_TB}, s{S_T0}, s{S_T2}")
    a(f"s_and_b32 s{S_T0}, s2, 6")
    a(f"s_lshl_b32 s{S_T0}, s{S_T0}, 1")
    a(f"s_lshr_b32 s{S_T1}, s{S_T1}, 3")
    a(f"s_add_u32 s{S_CB}, s{S_T0}, s{S_T1}")
    a(f"v_readfirstlane_b32 s{S_WAVE}, v{V_T}")
    a(f"v_and_b32 v{V_T}, 31, v{V_LANE}")
    a(f"v_and_b32 v{V_T + 1}, 15, v{V_LANE}")
    a(f"v_lshrrev_b32 v{V_T + 2}, 5, v{V_LANE}")
    a(f"v_xor_b32 v{V_T + 1}, v{V_T + 1}, v{V_T + 2}")
    a(f"v_lshlrev_b32 v{V_T + 1}, 4, v{V_T + 1}")
    a(f"v_lshlrev_b32 v{V_T}, 10, v{V_T}")
    a(f"v_add_u32 v{V_XA}, v{V_T}, v{V_T + 1}")
    for e in range(1, 8):
        a(f"v_xor_b32 v{V_XA + e}, {32 * e}, v{V_XA}")
    for e in range(8):
        a(f"v_add_u32 v{V_XB + e}, 0x10000, v{V_XA + e}")
    a(f"s_cmp_eq_u32 s{S_WAVE}, 4")
    a(f"s_cbranch_scc1 L_proj_special")
    a(f"s_lshl_b32 s{S_T0}, s{S_TB}, 7")
    a(f"s_lshl_b32 s{S_T1}, s{S_WAVE}, 3")
    a(f"s_add_u32 s{S_T0}, s{S_T0}, s{S_T1}")
    a(f"s_lshl_b32 s{S_XROW}, s{S_T0}, 10")
    a(f"s_lshl_b32 s{S_M0}, s{S_WAVE}, 12")
    a(f"s_lshl_b32 s{S_M0X}, s{S_WAVE}, 13")
    a(f"s_waitcnt lgkmcnt(0)")
    srd(a, R_X, S_X, 2048 * 1024)
    a(f"s_cmp_lt_u32 s{S_CB}, 4")
    a(f"s_cselect_b32 s{R_W}, s{S_WQ}, s{S_WQKV}")
    a(f"s_cselect_b32 s{S_T1}, s{S_WQ + 1}, s{S_WQKV + 1}")
    a(f"s_cselect_b32 s{S_PITCH}, 1, 3")
    a(f"s_cselect_b32 s{S_T0}, 0, 4")
    a(f"s_and_b32 s{R_W + 1}, s{S_T1}, 0xffff")
    a(f"s_lshl_b32 s{R_W + 2}, s{S_PITCH}, 19")
    a(f"s_mov_b32 s{R_W + 3}, 0x00020000")
    a(f"s_lshl_b32 s{S_PITCH}, s{S_PITCH}, 10")
    a(f"s_sub_u32 s{S_T0}, s{S_CB}, s{S_T0}")
    a(f"s_lshl_b32 s{S_T0}, s{S_T0}, 8")
    a(f"s_lshl_b32 s{S_P4}, s{S_PITCH}, 2")
    a(f"s_lshl_b32 s{S_P64}, s{S_PITCH}, 6")
    a(f"s_lshl_b32 s{S_T1}, s{S_WAVE}, 4")
    a(f"s_mul_i32 s{S_T1}, s{S_T1}, s{S_PITCH}")
    a(f"s_add_u32 s{S_WROW}, s{S_T0}, s{S_T1}")
    a(f"v_lshrrev_b32 v{V_T}, 4, v{V_LANE}")
    a(f"v_mul_lo_u32 v{V_T + 1}, v{V_T}, s{S_PITCH}")
    a(f"v_lshlrev_b32 v{V_T}, 2, v{V_T}")
    a(f"v_and_b32 v{V_T + 2}, 15, v{V_LANE}")
    a(f"v_xor_b32 v{V_T}, v{V_T}, v{V_T + 2}")
    a(f"v_lshlrev_b32 v{V_T}, 4, v{V_T}")
    a(f"v_add_u32 v{V_WOFF}, v{V_T}, v{V_T + 1}")

    def dma_w(vq, kc):
        slot = kc & 3
        a(f"s_mul_i32 s{S_T1}, s{S_P64}, {kc}")
        a(f"s_add_u32 s{S_T1}, s{S_T1}, s{S_WROW}")
        for q in range(4):
            a(f"s_add_u32 m0, s{S_M0}, {slot * 16384 + q * 1024}")
            a(f"s_nop 0")
            a(f"buffer_load_dwordx4 v{V_WOFF}, s[{R_W}:{R_W + 3}], s{S_T1} offen lds")
            vq.push(f"W{kc}")
            if q < 3:
                a(f"s_add_u32 s{S_T1}, s{S_T1}, s{S_P4}")

    def dma_x(vq, t):
        for q in range(8):
            a(f"v_xor_b32 v{V_PK + q}, {q << 4}, v{V_T + 3}")
        for q in range(8):
            a(f"s_add_u32 m0, s{S_M0X}, {XBASE[t] + q * 1024}")
            a(f"s_add_u32 s{S_T0}, s{S_XROW}, {t * 32768 + q * 1024}")
            a(f"buffer_load_dwordx4 v{V_PK + q}, s[{R_X}:{R_X + 3}], s{S_T0} offen lds")
            vq.push(f"X{t}")

    a(f"s_and_b32 s{S_T0}, s{S_WAVE}, 1")
    a(f"s_lshl_b32 s{S_T0}, s{S_T0}, 7")
    a(f"v_xor_b32 v{V_T + 3}, s{S_T0}, v{V_L16}")
    vq0 = VQ(a)
    srd(a, R_GW, S_GW, 1024)
    a(f"s_lshl_b32 s{S_T0}, s{S_TB}, 7")
    a(f"s_lshl_b32 s{S_T1}, s{S_CB}, 3")
    a(f"s_add_u32 s{S_T0}, s{S_T0}, s{S_T1}")
    a(f"s_lshl_b32 s{S_T1}, s{S_WAVE}, 1")
    a(f"s_add_u32 s{S_T3}, s{S_T0}, s{S_T1}")
    a(f"s_lshl_b32 s{S_T0}, s{S_T3}, 10")
    a(f"buffer_load_dwordx4 {vr(V_ACC, 4)}, v{V_L16}, s[{R_X}:{R_X + 3}], s{S_T0} offen")
    a(f"buffer_load_dwordx4 {vr(V_ACC + 4, 4)}, v{V_L16}, s[{R_X}:{R_X + 3}], s{S_T0} offen offset:1024")
    a(f"buffer_load_dwordx4 {vr(V_ACC + 8, 4)}, v{V_L16}, s[{R_GW}:{R_GW + 3}], 0 offen")
    for _ in range(3):
        vq0.push("G")
    dma_w(vq0, 0)
    dma_x(vq0, 0)
    for kc in range(1, 4):
        dma_w(vq0, kc)
    dma_x(vq0, 1)
    srd(a, R_WS, S_WS, WS_SIZE)
    a(f"v_lshrrev_b32 v{V_T}, 5, v{V_LANE}")
    a(f"v_lshrrev_b32 v{V_T + 1}, 2, v{V_LANE}")
    a(f"v_and_b32 v{V_T + 1}, 3, v{V_T + 1}")
    a(f"v_lshl_add_u32 v{V_T}, v{V_T}, 3, v{V_T + 1}")
    a(f"v_lshlrev_b32 v{V_T}, 8, v{V_T}")
    a(f"v_xor_b32 v{V_T + 1}, s{S_WAVE}, v{V_T + 1}")
    a(f"v_lshlrev_b32 v{V_T + 1}, 6, v{V_T + 1}")
    a(f"v_add_u32 v{V_T}, v{V_T}, v{V_T + 1}")
    a(f"v_lshrrev_b32 v{V_T + 1}, 4, v{V_LANE}")
    a(f"v_and_b32 v{V_T + 1}, 1, v{V_T + 1}")
    a(f"v_lshlrev_b32 v{V_T + 1}, 5, v{V_T + 1}")
    a(f"v_add_u32 v{V_T}, v{V_T}, v{V_T + 1}")
    a(f"v_and_b32 v{V_T + 1}, 3, v{V_LANE}")
    a(f"v_lshlrev_b32 v{V_T + 1}, 3, v{V_T + 1}")
    a(f"v_add_u32 v{V_WA}, v{V_T}, v{V_T + 1}")
    vq0.wait("G")
    gate_row_code(a, V_ACC, V_ACC + 8, V_XF)
    a(f"v_mov_b32 v{V_ACC + 12}, v{V_XF}")
    a(f"v_mov_b32 v{V_ACC + 13}, v{V_XF + 1}")
    gate_row_code(a, V_ACC + 4, V_ACC + 8, V_XF)
    a(f"v_cmp_eq_u32 vcc, 0, v{V_LANE}")
    a(f"s_lshl_b32 s{S_T0}, s{S_T3}, 2")
    a(f"s_add_u32 s{S_T0}, s{S_T0}, {G_OFF}")
    a(f"v_cndmask_b32 v{V_XF}, v{V_XF}, v{V_ACC + 12}, vcc")
    a(f"v_cndmask_b32 v{V_XF + 1}, v{V_XF + 1}, v{V_ACC + 13}, vcc")
    a(f"v_lshlrev_b32 v{V_XF + 2}, 2, v{V_LANE}")
    a(f"s_add_u32 s{S_T1}, s{S_T0}, 8192")
    a(f"s_mov_b64 exec, 3")
    a(f"buffer_store_dword v{V_XF}, v{V_XF + 2}, s[{R_WS}:{R_WS + 3}], s{S_T0} offen{STP}")
    a(f"buffer_store_dword v{V_XF + 1}, v{V_XF + 2}, s[{R_WS}:{R_WS + 3}], s{S_T1} offen{STP}")
    a(f"s_mov_b64 exec, -1")
    vq0.push("GS")
    vq0.push("GS")
    a(f"s_lshl_b32 s{S_T0}, s{S_CB}, 2")
    a(f"s_add_u32 s{S_T0}, s{S_T0}, s{S_WAVE}")
    a(f"s_cmp_ge_u32 s{S_CB}, 12")
    a(f"s_cbranch_scc1 L_proj_N")

    def xread(t, ks, buf):
        base = XBASE[t]
        xa = (V_XB if base >= 65536 else V_XA) + (ks & 7)
        a(f"ds_read_b128 {vr(V_XF + 4 * buf, 4)}, v{xa} offset:{(base & 0xffff) + (ks >> 3) * 256}")

    def wread(ks, dst, special):
        if special:
            for half in range(2):
                a(f"ds_read_b64_tr_b16 {vr(dst + 2 * half, 2)}, v{V_WA} offset:{(16 * ks + 4 * half) * 32}")
        else:
            kc, s = ks >> 2, ks & 3
            for half in range(2):
                a(f"ds_read_b64_tr_b16 {vr(dst + 2 * half, 2)}, v{V_WA} offset:{(kc & 3) * 16384 + (16 * s + 4 * half) * 256}")

    def mfma(typ, acc, wf, xf, first):
        c = "0" if first else vr(acc, 16)
        if typ == "T":
            a(f"v_mfma_f32_32x32x16_bf16 {vr(acc, 16)}, {vr(wf, 4)}, {vr(xf, 4)}, {c}")
        else:
            a(f"v_mfma_f32_32x32x16_bf16 {vr(acc, 16)}, {vr(xf, 4)}, {vr(wf, 4)}, {c}")

    def body(typ, vq, store_tile):
        for kc in range(8):
            if kc == 0:
                vq.wait("W0", "X0")
            else:
                vq.wait(f"W{kc}")
            a("s_barrier")
            if kc == 0:
                stamp(a, 1)
            if 1 <= kc <= 4:
                dma_w(vq, kc + 3)
            for s in range(4):
                ks = kc * 4 + s
                wread(ks, V_W + 4 * ks, False)
                xread(0, ks, s)
            for s in range(4):
                ks = kc * 4 + s
                a(f"s_waitcnt lgkmcnt({3 * (3 - s)})")
                mfma(typ, V_ACC, V_W + 4 * ks, V_XF + 4 * s, ks == 0)
        for t in range(1, 4):
            vq.wait(f"X{t}")
            a("s_barrier")
            if t == 1:
                dma_x(vq, 2)
                dma_x(vq, 3)
            acc = V_ACC + 16 * (t & 1)
            for ks in range(3):
                xread(t, ks, ks)
            for ks in range(32):
                if ks + 3 < 32:
                    xread(t, ks + 3, (ks + 3) & 3)
                    a("s_waitcnt lgkmcnt(3)")
                else:
                    a(f"s_waitcnt lgkmcnt({31 - ks})")
                mfma(typ, acc, V_W + 4 * ks, V_XF + 4 * (ks & 3), ks == 0)
                if ks == 6:
                    store_tile(t - 1, V_ACC + 16 * ((t - 1) & 1), vq)
        stamp(a, 2)
        a("s_nop 15")
        store_tile(3, V_ACC + 16, vq)
        if STAMP:
            a("s_waitcnt vmcnt(0)")
        stamp(a, 3)
        stamp_store(a, 1, S_WAVE, R_WS, V_T)
        a("s_endpgm")

    def pack(acc, half, d):
        for i in range(4):
            a(f"v_cvt_pk_bf16_f32 v{d + i}, v{acc + 8 * half + 2 * i}, v{acc + 8 * half + 2 * i + 1}")

    a(f"s_cmp_lt_u32 s{S_T0}, 32")
    a(f"s_cselect_b32 s{S_HSTR}, 1, 2")
    a(f"s_cselect_b32 s{S_T1}, {QF_OFF}, {(KV_OFF + 131072 - 64 * 131072) & 0xffffffff}")
    a(f"s_lshl_b32 s{S_TSTR}, s{S_HSTR}, 10")
    a(f"s_lshl_b32 s{S_HSTR}, s{S_HSTR}, 16")
    a(f"s_lshl_b32 s{S_T0}, s{S_T0}, 1")
    a(f"s_mul_i32 s{S_T0}, s{S_T0}, s{S_HSTR}")
    a(f"s_add_u32 s{S_DBASE}, s{S_T0}, s{S_T1}")
    a(f"s_lshl_b32 s{S_T0}, s{S_TB}, 2")
    a(f"s_mul_i32 s{S_T0}, s{S_T0}, s{S_TSTR}")
    a(f"s_add_u32 s{S_DBASE}, s{S_DBASE}, s{S_T0}")

    def store_T(t, acc, vq):
        pack(acc, 0, V_PK)
        pack(acc, 1, V_PK + 4)
        a(f"s_add_u32 s{S_T2}, s{S_DBASE}, s{S_HSTR}")
        a(f"buffer_store_dwordx4 {vr(V_PK, 4)}, v{V_L16}, s[{R_WS}:{R_WS + 3}], s{S_DBASE} offen{STP}")
        a(f"buffer_store_dwordx4 {vr(V_PK + 4, 4)}, v{V_L16}, s[{R_WS}:{R_WS + 3}], s{S_T2} offen{STP}")
        a(f"s_add_u32 s{S_DBASE}, s{S_DBASE}, s{S_TSTR}")
        vq.push("S")
        vq.push("S")
    import copy
    vqT = VQ(a)
    vqT.q = list(vq0.q)
    body("T", vqT, store_T)

    a.label("L_proj_N")
    a(f"s_sub_u32 s{S_T0}, s{S_T0}, 48")
    a(f"s_lshl_b32 s{S_T0}, s{S_T0}, 18")
    a(f"s_add_u32 s{S_DBASE}, s{S_T0}, {KV_OFF + 131072 + 1024}")
    a(f"s_lshl_b32 s{S_T0}, s{S_TB}, 13")
    a(f"s_add_u32 s{S_DBASE}, s{S_DBASE}, s{S_T0}")
    a(f"v_lshrrev_b32 v{V_T}, 4, v{V_LANE}")
    a(f"v_and_b32 v{V_T}, 1, v{V_T}")
    a(f"v_lshlrev_b32 v{V_T}, 17, v{V_T}")
    a(f"v_lshrrev_b32 v{V_T + 1}, 5, v{V_LANE}")
    a(f"v_lshlrev_b32 v{V_T + 1}, 9, v{V_T + 1}")
    a(f"v_add_u32 v{V_T}, v{V_T}, v{V_T + 1}")
    a(f"v_and_b32 v{V_T + 1}, 15, v{V_LANE}")
    a(f"v_lshlrev_b32 v{V_T + 1}, 4, v{V_T + 1}")
    a(f"v_add_u32 v{V_T + 4}, v{V_T}, v{V_T + 1}")

    def store_N(t, acc, vq):
        pack(acc, 0, V_PK)
        pack(acc, 1, V_PK + 4)
        a(f"buffer_store_dwordx4 {vr(V_PK, 4)}, v{V_T + 4}, s[{R_WS}:{R_WS + 3}], s{S_DBASE} offen{STP}")
        a(f"buffer_store_dwordx4 {vr(V_PK + 4, 4)}, v{V_T + 4}, s[{R_WS}:{R_WS + 3}], s{S_DBASE} offen offset:256{STP}")
        a(f"s_add_u32 s{S_DBASE}, s{S_DBASE}, 2048")
        vq.push("S")
        vq.push("S")
    vqN = VQ(a)
    vqN.q = list(vq0.q)
    body("N", vqN, store_N)

    a.label("L_proj_special")
    a(f"s_cmp_ge_u32 s{S_CB}, 8")
    a(f"s_cbranch_scc1 L_proj_end")
    a(f"s_waitcnt lgkmcnt(0)")
    srd(a, R_WS, S_WS, WS_SIZE)
    a(f"s_cmp_lt_u32 s{S_CB}, 4")
    a(f"s_cselect_b32 s{R_W}, s{S_WK}, s{S_WV}")
    a(f"s_cselect_b32 s{S_T1}, s{S_WK + 1}, s{S_WV + 1}")
    a(f"s_and_b32 s{R_W + 1}, s{S_T1}, 0xffff")
    a(f"s_mov_b32 s{R_W + 2}, 16384")
    a(f"s_mov_b32 s{R_W + 3}, 0x00020000")
    for i in range(16):
        a(f"s_mov_b32 m0, {SPW + i * 1024}")
        a(f"s_mov_b32 s{S_T0}, {i * 1024}")
        a(f"buffer_load_dwordx4 v{V_L16}, s[{R_W}:{R_W + 3}], s{S_T0} offen lds")
    a(f"v_lshrrev_b32 v{V_T}, 5, v{V_LANE}")
    a(f"v_lshrrev_b32 v{V_T + 1}, 2, v{V_LANE}")
    a(f"v_and_b32 v{V_T + 1}, 3, v{V_T + 1}")
    a(f"v_lshl_add_u32 v{V_T}, v{V_T}, 3, v{V_T + 1}")
    a(f"v_lshlrev_b32 v{V_T}, 5, v{V_T}")
    a(f"v_and_b32 v{V_T + 1}, 3, v{V_LANE}")
    a(f"v_lshlrev_b32 v{V_T + 1}, 3, v{V_T + 1}")
    a(f"v_add_u32 v{V_T}, v{V_T}, v{V_T + 1}")
    a(f"v_add_u32 v{V_WA}, {SPW}, v{V_T}")
    a(f"s_and_b32 s{S_T0}, s{S_CB}, 3")
    a(f"s_lshl_b32 s{S_T1}, s{S_TB}, 2")
    a(f"s_add_u32 s{S_T1}, s{S_T1}, s{S_T0}")
    a(f"s_lshl_b32 s{S_DBASE}, s{S_T1}, 11")
    a(f"s_add_u32 s{S_DBASE}, s{S_DBASE}, {KV_OFF}")
    a(f"v_lshrrev_b32 v{V_T + 1}, 5, v{V_LANE}")
    a(f"v_lshlrev_b32 v{V_T + 1}, 9, v{V_T + 1}")
    a(f"v_and_b32 v{V_T}, 15, v{V_LANE}")
    a(f"v_lshlrev_b32 v{V_T}, 4, v{V_T}")
    a(f"v_add_u32 v{V_T}, v{V_T}, v{V_T + 1}")
    a(f"v_and_b32 v{V_T + 1}, 16, v{V_LANE}")
    a(f"v_mov_b32 v{V_T + 2}, 0x40000000")
    a(f"v_cmp_eq_u32 vcc, 0, v{V_T + 1}")
    a(f"s_nop 1")
    a(f"v_cndmask_b32 v{V_T + 4}, v{V_T + 2}, v{V_T}, vcc")
    a("s_waitcnt vmcnt(0)")
    for kc in range(8):
        a("s_barrier")
        for ks in range(4 * kc, 4 * kc + 4):
            wread(ks, V_W + 4 * ks, True)
        a("s_waitcnt lgkmcnt(0)")
    a("s_barrier")
    extra = {0: 0, 1: 0, 2: 1, 3: 2}
    for t in range(4):
        a.label(f"L_proj_sp{t}")
        a(f"s_cmp_lg_u32 s{S_T0}, {t}")
        a(f"s_cbranch_scc1 L_proj_sp{t + 1}")
        for _ in range(extra[t]):
            a("s_barrier")
        for typ in ("T", "N"):
            if typ == "T":
                a(f"s_cmp_ge_u32 s{S_CB}, 4")
                a(f"s_cbranch_scc1 L_proj_spN{t}")
            else:
                a.label(f"L_proj_spN{t}")
            for ks in range(3):
                xread(t, ks, ks)
            for ks in range(32):
                if ks + 3 < 32:
                    xread(t, ks + 3, (ks + 3) & 3)
                    a("s_waitcnt lgkmcnt(3)")
                else:
                    a(f"s_waitcnt lgkmcnt({31 - ks})")
                mfma(typ, V_ACC, V_W + 4 * ks, V_XF + 4 * (ks & 3), ks == 0)
            a("s_nop 15")
            if typ == "T":
                pack(V_ACC, 0, V_PK)
                a(f"buffer_store_dwordx4 {vr(V_PK, 4)}, v{V_L16}, s[{R_WS}:{R_WS + 3}], s{S_DBASE} offen{STP}")
            else:
                pack(V_ACC, 0, V_PK)
                pack(V_ACC, 1, V_PK + 4)
                a(f"buffer_store_dwordx4 {vr(V_PK, 4)}, v{V_T + 4}, s[{R_WS}:{R_WS + 3}], s{S_DBASE} offen offset:1024{STP}")
                a(f"buffer_store_dwordx4 {vr(V_PK + 4, 4)}, v{V_T + 4}, s[{R_WS}:{R_WS + 3}], s{S_DBASE} offen offset:1280{STP}")
            a("s_endpgm")
    a.label("L_proj_sp4")
    a.label("L_proj_end")
    a("s_endpgm")
    return K, NV


def gen_attn(a, bias=40.0):
    K = "attn_kernel"
    kernel_begin(a, K)
    S_X, S_GW, S_WS = 4, 6, 8
    R_WS, R_X, R_GW = 12, 16, 20
    S_WAVE, S_HEAD, S_QT, S_KV = 24, 25, 26, 27
    S_T0, S_T1, S_T2 = 28, 29, 30
    S_KVH = 31
    S_MASK = 32
    S_IT = 34
    S_G, S_OMG = 35, 36
    S_SLOW = 38
    S_QOFF = 40
    S_WOA, S_WOB = 42, 44
    R_WO = 48
    V_LANE = 1
    V_L16 = 2
    V_A = 3
    V_T = 4
    V_QH, V_QL = 12, 16
    V_K = 20
    V_V = 28
    V_P = 36
    V_M = 44
    V_C = 45
    V_NM = 48
    V_S = 64
    V_O = 96
    NV = 112
    ABL = [x[6:] for x in sys.argv if x.startswith("--abl=")]

    a(f"s_cmp_ge_u32 s2, 256")
    a(f"s_cbranch_scc1 L_attn_end")
    stamp(a, 0)
    a(f"s_load_dwordx2 s[{S_WS}:{S_WS + 1}], s[0:1], 88")
    a(f"s_load_dwordx2 s[{S_X}:{S_X + 1}], s[0:1], 0")
    a(f"s_load_dwordx2 s[{S_GW}:{S_GW + 1}], s[0:1], 64")
    a(f"s_load_dwordx2 s[{S_WOA}:{S_WOA + 1}], s[0:1], 32")
    a(f"s_load_dwordx2 s[{S_WOB}:{S_WOB + 1}], s[0:1], 56")
    a(f"v_and_b32 v{V_LANE}, 63, v0")
    a(f"v_lshrrev_b32 v{V_T}, 6, v0")
    a(f"v_lshlrev_b32 v{V_L16}, 4, v{V_LANE}")
    a(f"v_readfirstlane_b32 s{S_WAVE}, v{V_T}")
    a(f"s_and_b32 s{S_T0}, s2, 7")
    a(f"s_lshr_b32 s{S_T1}, s2, 3")
    a(f"s_and_b32 s{S_T2}, s{S_T1}, 3")
    a(f"s_lshr_b32 s{S_T1}, s{S_T1}, 2")
    a(f"s_lshl_b32 s{S_T1}, s{S_T1}, 3")
    a(f"s_add_u32 s{S_HEAD}, s{S_T1}, s{S_T0}")
    a(f"s_lshl_b32 s{S_QT}, s{S_T2}, 4")
    a(f"s_add_u32 s{S_QT}, s{S_QT}, s{S_WAVE}")
    a(f"s_sub_u32 s{S_T0}, s{S_HEAD}, 31")
    a(f"s_cmp_lt_u32 s{S_HEAD}, 32")
    a(f"s_cselect_b32 s{S_KVH}, 0, s{S_T0}")
    a(f"s_lshl_b32 s{S_KV}, s{S_KVH}, 17")
    a(f"s_add_u32 s{S_KV}, s{S_KV}, {KV_OFF}")
    a(f"s_mov_b32 s{S_MASK}, 0x0000ffff")
    a(f"s_mov_b32 s{S_MASK + 1}, 0x0000ffff")
    a(f"s_lshl_b32 s{S_T0}, s{S_HEAD}, 16")
    a(f"s_lshl_b32 s{S_T1}, s{S_QT}, 10")
    a(f"s_add_u32 s{S_QOFF}, s{S_T0}, s{S_T1}")
    a(f"s_lshl_b32 s{S_T0}, s{S_WAVE}, 10")
    a(f"s_add_u32 s{S_T1}, s{S_T0}, s{S_KV}")
    a(f"s_waitcnt lgkmcnt(0)")
    srd(a, R_WS, S_WS, WS_SIZE)
    a(f"s_xor_b32 s{S_T2}, s{S_T0}, 1024")
    a(f"s_add_u32 s{S_IT}, s{S_T2}, s{S_KV}")
    a(f"s_mov_b32 m0, s{S_T0}")
    a(f"s_nop 0")
    a(f"buffer_load_dwordx4 v{V_L16}, s[{R_WS}:{R_WS + 3}], s{S_T1} offen lds")
    a(f"buffer_load_dwordx4 {vr(V_S, 4)}, v{V_L16}, s[{R_WS}:{R_WS + 3}], s{S_QOFF} offen")
    for i in range(1, 8):
        lds_s, glb_s = (S_T0, S_T1) if i % 2 == 0 else (S_T2, S_IT)
        a(f"s_add_u32 m0, s{lds_s}, {i * 16384}")
        a(f"s_add_u32 s{S_G}, s{glb_s}, {i * 16384}")
        a(f"buffer_load_dwordx4 v{V_L16}, s[{R_WS}:{R_WS + 3}], s{S_G} offen lds")
    a(f"s_and_b32 s{S_OMG}, s{S_WAVE}, 14")
    a(f"s_lshl_b32 s{S_OMG}, s{S_OMG}, 10")
    a(f"v_add_u32 v{V_M}, s{S_OMG}, v{V_L16}")
    a(f"s_and_b32 s{S_OMG}, s{S_WAVE}, 1")
    a(f"v_and_b32 v{V_T}, 27, v{V_LANE}")
    a(f"v_cmp_eq_u32 vcc, 16, v{V_T}")
    a(f"v_mov_b32 v{V_T + 1}, 0x3f803f80")
    a(f"s_nop 1")
    for i in range(8):
        a(f"v_cndmask_b32 v{V_V + i}, 0, v{V_T + 1}, vcc")
    for i in range(16):
        a(f"v_mov_b32 v{V_O + i}, 0")
    a(f"v_mov_b32 v{V_C}, {f32bits(C_SCALE):#x}")
    a(f"v_mov_b32 v{V_A}, v{V_L16}")
    def kconv(off, tmp):
        a(f"ds_read_b128 {vr(tmp, 4)}, v{V_M} offset:{off}")
        a(f"s_waitcnt lgkmcnt(0)")
        for i in range(4):
            a(f"v_lshlrev_b32 v{V_T}, 16, v{tmp + i}")
            a(f"v_and_b32 v{V_T + 1}, 0xffff0000, v{tmp + i}")
            a(f"v_max3_f32 v{V_QL}, abs(v{V_T}), abs(v{V_T + 1}), v{V_QL}")
            a(f"v_cvt_pkrtz_f16_f32 v{tmp + i}, v{V_T}, v{V_T + 1}")
        a(f"ds_write_b128 v{V_M}, {vr(tmp, 4)} offset:{off}")

    a(f"v_mov_b32 v{V_QL}, 0")
    a(f"s_waitcnt vmcnt(7)")
    a(f"s_cmp_lg_u32 s{S_OMG}, 0")
    a(f"s_cbranch_scc1 L_attn_nc0")
    kconv(0, V_S + 4)
    a.label("L_attn_nc0")
    a(f"v_mov_b32 v{V_T + 4}, 0")
    for i in range(4):
        q = V_S + i
        a(f"v_lshlrev_b32 v{V_T}, 16, v{q}")
        a(f"v_and_b32 v{V_T + 1}, 0xffff0000, v{q}")
        a(f"v_mul_f32 v{V_T}, v{V_C}, v{V_T}")
        a(f"v_mul_f32 v{V_T + 1}, v{V_C}, v{V_T + 1}")
        a(f"v_max3_f32 v{V_T + 4}, abs(v{V_T}), abs(v{V_T + 1}), v{V_T + 4}")
        a(f"v_cvt_f16_f32 v{V_T}, v{V_T}")
        a(f"v_cvt_f16_f32 v{V_T + 1}, v{V_T + 1}")
        a(f"v_pack_b32_f16 v{V_QH + i}, v{V_T}, v{V_T + 1}")
    a(f"v_mov_b32 v{V_T}, 0x477fe000")
    a(f"v_cmp_nle_f32 vcc, v{V_T + 4}, v{V_T}")
    a(f"s_mov_b64 s[{S_SLOW}:{S_SLOW + 1}], vcc")
    a(f"s_waitcnt lgkmcnt(0)")
    a(f"s_barrier")
    stamp(a, 1)

    def mf(d, A, B, c, ty="bf16"):
        a(f"v_mfma_f32_32x32x16_{ty} {vr(d, 16)}, {vr(A, 4)}, {vr(B, 4)}, {c}")

    def vread(dst, off):
        a(f"s_mov_b64 exec, s[{S_MASK}:{S_MASK + 1}]")
        a(f"ds_read_b128 {vr(dst, 4)}, v{V_A} offset:{off}")
        a(f"s_mov_b64 exec, -1")

    def tile_max(S, dst, tmp):
        a(f"v_max3_f32 v{dst}, v{S}, v{S + 1}, v{S + 2}")
        for i in range(3, 15, 2):
            a(f"v_max3_f32 v{dst}, v{dst}, v{S + i}, v{S + i + 1}")
        a(f"v_max_f32 v{dst}, v{dst}, v{S + 15}")
        a(f"v_mov_b32 v{tmp}, v{dst}")
        a(f"s_nop 1")
        a(f"v_permlane32_swap_b32 v{dst}, v{tmp}")
        a(f"s_nop 1")
        a(f"v_max_f32 v{dst}, v{dst}, v{tmp}")

    a(f"ds_read_b128 {vr(V_K, 4)}, v{V_A} offset:0")
    a(f"ds_read_b128 {vr(V_K + 4, 4)}, v{V_A} offset:2048")
    vread(V_V, 1024)
    a(f"s_waitcnt lgkmcnt(2)")
    mf(V_NM, V_K, V_QH, "0", "f16")
    a("s_nop 15")
    a("s_nop 3")
    S0 = V_S
    tile_max(V_NM, V_T, V_T + 1)
    a(f"v_sub_f32 v{V_T}, {f32bits(-bias):#x}, v{V_T}")
    for i in range(16):
        a(f"v_add_f32 v{S0 + i}, v{V_NM + i}, v{V_T}")
    for i in range(16):
        a(f"v_mov_b32 v{V_NM + i}, v{V_T}")
    for i in range(4, 8):
        a(f"v_mov_b32 v{V_P + i}, 0")
    a(f"s_mov_b32 s{S_IT}, 0")

    def ex(A, i):
        if "exp" not in ABL:
            a(f"v_exp_f32 v{A + i}, v{A + i}")

    def cv(A, i):
        if "cvt" not in ABL:
            a(f"v_cvt_pk_bf16_f32 v{V_P + i}, v{A + 2 * i}, v{A + 2 * i + 1}")

    def sub_iter(par):
        A = V_S + 16 * par
        B = V_S + 16 * (par ^ 1)
        Kn = V_K + 4 * (par ^ 1)
        Kp = V_K + 4 * par
        base = 2048 * par
        a(f"s_waitcnt lgkmcnt(1)")
        mf(B, Kn, V_QH, vr(V_NM, 16), "f16")
        a(f"ds_read_b128 {vr(Kp, 4)}, v{V_A} offset:{base + 4096}")
        for i in range(0, 5):
            ex(A, i)
        mf(V_O, V_V + 4, V_P + 4, vr(V_O, 16))
        vread(V_V + 4, base + 1024 + 256)
        for i in range(5, 8):
            ex(A, i)
        for i in range(0, 4):
            cv(A, i)
        for i in range(8, 10):
            ex(A, i)
        a(f"s_waitcnt lgkmcnt(2)")
        mf(V_O, V_V, V_P, vr(V_O, 16))
        vread(V_V, base + 2048 + 1024)
        for i in range(10, 16):
            ex(A, i)
        for i in range(4, 8):
            cv(A, i)

    ladder = [(0, 3), (40, 2), (56, 1), (60, 0)]
    for x in sys.argv:
        if x.startswith("--ladder="):
            bs = [int(v) for v in x.split("=")[1].split(",")]
            ladder = [(0, 3)] + [(b, 2 - i) for i, b in enumerate(bs)]
    a("s_setprio 3")
    a.label("L_attn_loop")
    for u in range(4):
        for (t0, pr) in ladder:
            if t0 > 0 and (t0 % 8) // 2 == u:
                a(f"s_cmp_eq_u32 s{S_IT}, {t0 // 8}")
                a(f"s_cbranch_scc0 L_attn_np{t0}")
                a(f"s_setprio {pr}")
                a.label(f"L_attn_np{t0}")
        if u == 2:
            a(f"s_cmp_eq_u32 s{S_IT}, 0")
            a(f"s_cbranch_scc0 L_attn_nobar")
            a(f"s_waitcnt vmcnt(0) lgkmcnt(0)")
            a(f"s_cmp_lg_u32 s{S_OMG}, 0")
            a(f"s_cbranch_scc1 L_attn_c_odd")
            for i in (2, 4, 6):
                kconv(i * 16384 if i * 16384 < 65536 else 0, V_T + 4) if False else None
            a(f"v_add_u32 v{V_M}, 0x8000, v{V_M}")
            for i in range(3):
                kconv(0, V_T + 4)
                a(f"v_add_u32 v{V_M}, 0x8000, v{V_M}")
            a(f"s_branch L_attn_c_done")
            a.label("L_attn_c_odd")
            a(f"v_add_u32 v{V_M}, 0x4000, v{V_M}")
            for i in range(4):
                kconv(0, V_T + 4)
                a(f"v_add_u32 v{V_M}, 0x8000, v{V_M}")
            a.label("L_attn_c_done")
            a(f"v_mov_b32 v{V_T}, 0x477fe000")
            a(f"v_cmp_nle_f32 vcc, v{V_QL}, v{V_T}")
            a(f"s_cmp_lg_u64 vcc, 0")
            a(f"s_cselect_b32 s{S_T0}, 1, 0")
            a(f"s_lshl_b32 s{S_T1}, s{S_WAVE}, 2")
            a(f"s_add_u32 s{S_T1}, s{S_T1}, {131072 + 8192}")
            a(f"v_mov_b32 v{V_T}, s{S_T0}")
            a(f"v_mov_b32 v{V_T + 1}, s{S_T1}")
            a(f"ds_write_b32 v{V_T + 1}, v{V_T}")
            a(f"s_waitcnt lgkmcnt(0)")
            a(f"s_barrier")
            if "--nopf" not in sys.argv:
                a(f"s_lshr_b32 s{S_T0}, s2, 3")
                a(f"s_lshl_b32 s{S_T0}, s{S_T0}, 4")
                a(f"s_add_u32 s{S_T0}, s{S_T0}, s{S_WAVE}")
                a(f"s_cmp_lt_u32 s{S_T0}, 256")
                a(f"s_cselect_b32 s{R_WO}, s{S_WOA}, s{S_WOB}")
                a(f"s_cselect_b32 s{S_T1}, s{S_WOA + 1}, s{S_WOB + 1}")
                a(f"s_and_b32 s{R_WO + 1}, s{S_T1}, 0xffff")
                a(f"s_mov_b32 s{R_WO + 2}, {512 * 1024}")
                a(f"s_mov_b32 s{R_WO + 3}, 0x00020000")
                a(f"s_and_b32 s{S_T0}, s{S_T0}, 255")
                a(f"s_lshl_b32 s{S_T0}, s{S_T0}, 11")
                a(f"buffer_load_dwordx4 {vr(V_QL, 4)}, v{V_L16}, s[{R_WO}:{R_WO + 3}], s{S_T0} offen")
                a(f"buffer_load_dwordx4 {vr(V_QL, 4)}, v{V_L16}, s[{R_WO}:{R_WO + 3}], s{S_T0} offen offset:1024")
            a.label("L_attn_nobar")
        sub_iter(0)
        sub_iter(1)
        a(f"v_add_u32 v{V_A}, 0x1000, v{V_A}")
    a(f"s_add_u32 s{S_IT}, s{S_IT}, 1")
    a(f"s_cmp_lt_u32 s{S_IT}, 8")
    a(f"s_cbranch_scc1 L_attn_loop")
    a(f"s_waitcnt lgkmcnt(0)")
    stamp(a, 2)
    mf(V_O, V_V + 4, V_P + 4, vr(V_O, 16))
    a("s_nop 15")
    a("s_nop 3")
    a(f"v_and_b32 v{V_T}, 15, v{V_LANE}")
    a(f"v_lshlrev_b32 v{V_T}, 2, v{V_T}")
    a(f"v_add_u32 v{V_T}, {131072 + 8192}, v{V_T}")
    a(f"ds_read_b32 v{V_T + 1}, v{V_T}")
    a(f"s_waitcnt lgkmcnt(0)")
    a(f"v_cmp_ne_u32 vcc, 0, v{V_T + 1}")
    a(f"s_or_b64 s[{S_SLOW}:{S_SLOW + 1}], s[{S_SLOW}:{S_SLOW + 1}], vcc")
    a(f"v_mov_b32 v{V_T}, {f32bits(2.0 ** 120):#x}")
    a(f"v_cmp_nlt_f32 vcc, v{V_O + 8}, v{V_T}")
    a(f"s_or_b64 s[{S_SLOW}:{S_SLOW + 1}], s[{S_SLOW}:{S_SLOW + 1}], vcc")
    for i in range(8):
        a(f"v_cmp_nlt_f32 vcc, abs(v{V_O + i}), v{V_T}")
        a(f"s_or_b64 s[{S_SLOW}:{S_SLOW + 1}], s[{S_SLOW}:{S_SLOW + 1}], vcc")
    if "--forceslow" in sys.argv:
        a(f"s_branch L_attn_slow")
    a(f"s_cmp_eq_u64 s[{S_SLOW}:{S_SLOW + 1}], 0")
    a(f"s_cbranch_scc0 L_attn_slow")
    a.label("L_attn_epi")
    a(f"v_rcp_f32 v{V_T}, v{V_O + 8}")
    a("s_nop 0")
    for i in range(8):
        a(f"v_mul_f32 v{V_O + i}, v{V_O + i}, v{V_T}")
    for i in range(4):
        a(f"v_cvt_pk_bf16_f32 v{V_P + i}, v{V_O + 2 * i}, v{V_O + 2 * i + 1}")
    a(f"s_add_u32 s{S_T0}, s{S_QOFF}, {OF_OFF}")
    a(f"buffer_store_dwordx4 {vr(V_P, 4)}, v{V_L16}, s[{R_WS}:{R_WS + 3}], s{S_T0} offen{STP}")
    stamp(a, 3)
    stamp_store(a, 0, S_WAVE, R_WS, V_T)
    a.label("L_attn_end")
    a("s_endpgm")

    a.label("L_attn_slow")
    a("s_setprio 0")
    a(f"buffer_load_dwordx4 {vr(V_S, 4)}, v{V_L16}, s[{R_WS}:{R_WS + 3}], s{S_QOFF} offen")
    a(f"v_mov_b32 v{V_A}, v{V_L16}")
    for i in range(16):
        a(f"v_mov_b32 v{V_O + i}, 0")
    a(f"v_mov_b32 v{V_M}, 0xff7fffff")
    a(f"s_mov_b32 s{S_IT}, 0")
    a(f"s_mov_b32 s{S_T2}, s{S_KV}")
    a(f"s_waitcnt vmcnt(0)")
    for i in range(4):
        q = V_S + i
        a(f"v_lshlrev_b32 v{V_T}, 16, v{q}")
        a(f"v_and_b32 v{V_T + 1}, 0xffff0000, v{q}")
        a(f"v_mul_f32 v{V_T}, v{V_C}, v{V_T}")
        a(f"v_mul_f32 v{V_T + 1}, v{V_C}, v{V_T + 1}")
        a(f"v_cvt_pk_bf16_f32 v{V_QH + i}, v{V_T}, v{V_T + 1}")
        a(f"v_lshlrev_b32 v{V_T + 2}, 16, v{V_QH + i}")
        a(f"v_and_b32 v{V_T + 3}, 0xffff0000, v{V_QH + i}")
        a(f"v_sub_f32 v{V_T}, v{V_T}, v{V_T + 2}")
        a(f"v_sub_f32 v{V_T + 1}, v{V_T + 1}, v{V_T + 3}")
        a(f"v_cvt_pk_bf16_f32 v{V_QL + i}, v{V_T}, v{V_T + 1}")
    a.label("L_attn_slow_loop")
    a(f"buffer_load_dwordx4 {vr(V_K, 4)}, v{V_L16}, s[{R_WS}:{R_WS + 3}], s{S_T2} offen")
    vread(V_V, 1024)
    vread(V_V + 4, 1024 + 256)
    a(f"s_waitcnt vmcnt(0) lgkmcnt(0)")
    mf(S0, V_K, V_QH, "0")
    mf(S0, V_K, V_QL, vr(S0, 16))
    a("s_nop 15")
    a("s_nop 3")
    tile_max(S0, V_T, V_T + 1)
    a(f"v_max_f32 v{V_T}, v{V_T}, v{V_M}")
    a(f"v_sub_f32 v{V_T + 1}, v{V_M}, v{V_T}")
    a(f"v_exp_f32 v{V_T + 1}, v{V_T + 1}")
    a(f"v_mov_b32 v{V_M}, v{V_T}")
    for i in range(16):
        a(f"v_mul_f32 v{V_O + i}, v{V_O + i}, v{V_T + 1}")
    for i in range(16):
        a(f"v_sub_f32 v{S0 + i}, v{S0 + i}, v{V_M}")
        a(f"v_exp_f32 v{S0 + i}, v{S0 + i}")
    a("s_nop 0")
    for i in range(8):
        a(f"v_cvt_pk_bf16_f32 v{V_P + i}, v{S0 + 2 * i}, v{S0 + 2 * i + 1}")
    a("s_nop 1")
    mf(V_O, V_V, V_P, vr(V_O, 16))
    mf(V_O, V_V + 4, V_P + 4, vr(V_O, 16))
    a("s_nop 15")
    a("s_nop 3")
    a(f"v_add_u32 v{V_A}, 0x800, v{V_A}")
    a(f"s_add_u32 s{S_T2}, s{S_T2}, 2048")
    a(f"s_add_u32 s{S_IT}, s{S_IT}, 1")
    a(f"s_cmp_lt_u32 s{S_IT}, 64")
    a(f"s_cbranch_scc1 L_attn_slow_loop")
    a(f"s_branch L_attn_epi")
    return K, NV


def gen_out(a):
    K = "out_kernel"
    kernel_begin(a, K)
    S_WOA, S_WOB, S_OUT, S_WS = 4, 6, 8, 10
    R_WA, R_OUT, R_WS = 12, 20, 24
    S_TB, S_CB, S_WAVE, S_TT, S_KH, S_BR = 28, 29, 30, 31, 32, 33
    S_T0, S_T1, S_T2 = 34, 35, 36
    S_OB = 37
    S_WB = 38
    S_M0 = 39
    S_Q = 40
    V_LANE, V_L16, V_WOFF, V_WA = 1, 2, 3, 4
    V_T = 5
    V_G, V_OMG = 12, 13
    V_XA = 14
    V_WA1 = 15
    V_WF = 16
    V_ACC = 32
    V_OFR = 64
    NV = 128

    a(f"s_cmp_ge_u32 s2, 256")
    a(f"s_cbranch_scc1 L_out_end")
    stamp(a, 0)
    a(f"s_load_dwordx2 s[{S_WS}:{S_WS + 1}], s[0:1], 88")
    a(f"s_load_dwordx2 s[{S_WOA}:{S_WOA + 1}], s[0:1], 32")
    a(f"s_load_dwordx2 s[{S_WOB}:{S_WOB + 1}], s[0:1], 56")
    a(f"s_load_dwordx2 s[{S_OUT}:{S_OUT + 1}], s[0:1], 72")
    a(f"v_and_b32 v{V_LANE}, 63, v0")
    a(f"v_lshrrev_b32 v{V_T}, 6, v0")
    a(f"v_lshlrev_b32 v{V_L16}, 4, v{V_LANE}")
    a(f"v_readfirstlane_b32 s{S_WAVE}, v{V_T}")
    a(f"s_and_b32 s{S_T0}, s2, 7")
    a(f"s_lshl_b32 s{S_T0}, s{S_T0}, 2")
    a(f"s_lshr_b32 s{S_T1}, s2, 3")
    a(f"s_and_b32 s{S_T1}, s{S_T1}, 3")
    a(f"s_add_u32 s{S_TB}, s{S_T0}, s{S_T1}")
    a(f"s_lshr_b32 s{S_CB}, s2, 5")
    a(f"s_and_b32 s{S_TT}, s{S_WAVE}, 1")
    a(f"s_lshr_b32 s{S_Q}, s{S_WAVE}, 1")
    a(f"s_and_b32 s{S_KH}, s{S_Q}, 1")
    a(f"s_lshr_b32 s{S_BR}, s{S_WAVE}, 2")
    a(f"v_lshrrev_b32 v{V_T}, 3, v{V_LANE}")
    a(f"v_lshlrev_b32 v{V_T + 1}, 10, v{V_T}")
    a(f"v_lshrrev_b32 v{V_T}, 1, v{V_T}")
    a(f"v_and_b32 v{V_T}, 1, v{V_T}")
    a(f"v_lshlrev_b32 v{V_T}, 2, v{V_T}")
    a(f"v_and_b32 v{V_T + 2}, 7, v{V_LANE}")
    a(f"v_xor_b32 v{V_T}, v{V_T}, v{V_T + 2}")
    a(f"v_lshlrev_b32 v{V_T}, 4, v{V_T}")
    a(f"v_add_u32 v{V_WOFF}, v{V_T}, v{V_T + 1}")
    a(f"s_lshl_b32 s{S_T0}, s{S_TB}, 1")
    a(f"s_add_u32 s{S_T0}, s{S_T0}, s{S_TT}")
    a(f"s_lshl_b32 s{S_OB}, s{S_T0}, 10")
    a(f"s_lshl_b32 s{S_T1}, s{S_Q}, 20")
    a(f"s_add_u32 s{S_OB}, s{S_OB}, s{S_T1}")
    a(f"s_add_u32 s{S_OB}, s{S_OB}, {OF_OFF}")
    a(f"s_lshl_b32 s{S_WB}, s{S_CB}, 7")
    a(f"s_lshl_b32 s{S_T0}, s{S_KH}, 18")
    a(f"s_add_u32 s{S_WB}, s{S_WB}, s{S_T0}")
    a(f"s_lshl_b32 s{S_T0}, s{S_TT}, 15")
    a(f"s_add_u32 s{S_WB}, s{S_WB}, s{S_T0}")
    a(f"s_lshl_b32 s{S_M0}, s{S_Q}, 15")
    a(f"s_lshl_b32 s{S_T0}, s{S_TT}, 12")
    a(f"s_add_u32 s{S_M0}, s{S_M0}, s{S_T0}")
    a(f"s_waitcnt lgkmcnt(0)")
    srd(a, R_WS, S_WS, WS_SIZE)
    a(f"s_cmp_eq_u32 s{S_BR}, 0")
    a(f"s_cselect_b32 s{R_WA}, s{S_WOA}, s{S_WOB}")
    a(f"s_cselect_b32 s{S_T0}, s{S_WOA + 1}, s{S_WOB + 1}")
    a(f"s_and_b32 s{R_WA + 1}, s{S_T0}, 0xffff")
    a(f"s_mov_b32 s{R_WA + 2}, {512 * 1024}")
    a(f"s_mov_b32 s{R_WA + 3}, 0x00020000")

    queue = []

    def dma_w(st):
        for q in range(4):
            a(f"s_add_u32 m0, s{S_M0}, {st * 8192 + q * 1024}")
            a(f"s_add_u32 s{S_T0}, s{S_WB}, {st * 65536 + q * 8192}")
            a(f"buffer_load_dwordx4 v{V_WOFF}, s[{R_WA}:{R_WA + 3}], s{S_T0} offen lds")
            queue.append(("W", st))

    def load_o(st):
        for s in range(4):
            hd = st * 4 + s
            a(f"s_add_u32 s{S_T0}, s{S_OB}, {hd * 65536}")
            a(f"buffer_load_dwordx4 {vr(V_OFR + 4 * hd, 4)}, v{V_L16}, s[{R_WS}:{R_WS + 3}], s{S_T0} offen")
            queue.append(("O", st))

    def wait_for(st):
        idx = max(i for i, (k, s) in enumerate(queue) if s == st and k in ("W", "O"))
        n = len(queue) - 1 - idx
        a(f"s_waitcnt vmcnt({n})")
        del queue[: idx + 1]

    for st in range(4):
        load_o(st)
        dma_w(st)
    a(f"v_and_b32 v{V_T}, 31, v{V_LANE}")
    a(f"v_lshlrev_b32 v{V_T}, 2, v{V_T}")
    a(f"s_lshl_b32 s{S_T0}, s{S_TB}, 1")
    a(f"s_add_u32 s{S_T0}, s{S_T0}, s{S_TT}")
    a(f"s_lshl_b32 s{S_T0}, s{S_T0}, 7")
    a(f"s_add_u32 s{S_T0}, s{S_T0}, {G_OFF}")
    a(f"buffer_load_dword v{V_G}, v{V_T}, s[{R_WS}:{R_WS + 3}], s{S_T0} offen")
    a(f"s_add_u32 s{S_T0}, s{S_T0}, 8192")
    a(f"buffer_load_dword v{V_OMG}, v{V_T}, s[{R_WS}:{R_WS + 3}], s{S_T0} offen")
    queue.append(("G", -1))
    queue.append(("G", -1))
    srd(a, R_OUT, S_OUT, 2048 * 1024)
    a(f"v_lshrrev_b32 v{V_T}, 5, v{V_LANE}")
    a(f"v_lshrrev_b32 v{V_T + 1}, 2, v{V_LANE}")
    a(f"v_and_b32 v{V_T + 1}, 3, v{V_T + 1}")
    a(f"v_lshl_add_u32 v{V_T}, v{V_T}, 2, v{V_T + 1}")
    a(f"v_lshlrev_b32 v{V_T}, 7, v{V_T}")
    a(f"v_lshrrev_b32 v{V_T + 1}, 1, v{V_T + 1}")
    a(f"v_lshlrev_b32 v{V_T + 1}, 6, v{V_T + 1}")
    a(f"v_add_u32 v{V_T}, v{V_T}, v{V_T + 1}")
    a(f"v_lshrrev_b32 v{V_T + 1}, 4, v{V_LANE}")
    a(f"v_and_b32 v{V_T + 1}, 1, v{V_T + 1}")
    a(f"v_lshlrev_b32 v{V_T + 1}, 5, v{V_T + 1}")
    a(f"v_add_u32 v{V_T}, v{V_T}, v{V_T + 1}")
    a(f"v_and_b32 v{V_T + 1}, 3, v{V_LANE}")
    a(f"v_lshlrev_b32 v{V_T + 1}, 3, v{V_T + 1}")
    a(f"v_add_u32 v{V_T}, v{V_T}, v{V_T + 1}")
    a(f"s_lshl_b32 s{S_T0}, s{S_Q}, 15")
    a(f"v_add_u32 v{V_WA}, s{S_T0}, v{V_T}")
    a(f"v_xor_b32 v{V_WA1}, 64, v{V_WA}")
    a(f"s_lshl_b32 s{S_T0}, s{S_WAVE}, 13")
    a(f"v_add_u32 v{V_XA}, s{S_T0}, v{V_L16}")
    for i in range(32):
        a(f"v_mov_b32 v{V_ACC + i}, 0")
    nstep = 0
    for st in range(4):
        wait_for(st)
        a("s_barrier")
        if st == 0:
            stamp(a, 1)

        def rd(s, wb):
            off = st * 8192 + s * 2048
            for ct in range(2):
                wa = V_WA if ct == 0 else V_WA1
                a(f"ds_read_b64_tr_b16 {vr(V_WF + 8 * wb + 4 * ct, 2)}, v{wa} offset:{off}")
                a(f"ds_read_b64_tr_b16 {vr(V_WF + 8 * wb + 4 * ct + 2, 2)}, v{wa} offset:{off + 1024}")
        rd(0, 0)
        for s in range(4):
            if s < 3:
                rd(s + 1, (s + 1) & 1)
                a("s_waitcnt lgkmcnt(4)")
            else:
                a("s_waitcnt lgkmcnt(0)")
            for ct in range(2):
                acc = vr(V_ACC + 16 * ct, 16)
                a(f"v_mfma_f32_32x32x16_bf16 {acc}, {vr(V_WF + 8 * (s & 1) + 4 * ct, 4)}, {vr(V_OFR + 4 * (st * 4 + s), 4)}, {acc}")
    stamp(a, 2)
    a("s_waitcnt vmcnt(0)")
    a("s_barrier")
    a("s_nop 15")
    for q in range(8):
        a(f"ds_write_b128 v{V_XA}, {vr(V_ACC + 4 * q, 4)} offset:{q * 1024}")
    a(f"v_and_b32 v{V_T}, 31, v{V_LANE}")
    a(f"v_lshlrev_b32 v{V_T}, 10, v{V_T}")
    a(f"v_lshrrev_b32 v{V_T + 1}, 5, v{V_LANE}")
    a(f"v_lshlrev_b32 v{V_T + 1}, 3, v{V_T + 1}")
    a(f"v_add_u32 v{V_T}, v{V_T}, v{V_T + 1}")
    a(f"s_lshl_b32 s{S_T0}, s{S_TB}, 1")
    a(f"s_add_u32 s{S_T0}, s{S_T0}, s{S_TT}")
    a(f"s_lshl_b32 s{S_T0}, s{S_T0}, 15")
    a(f"s_lshl_b32 s{S_T1}, s{S_CB}, 7")
    a(f"s_add_u32 s{S_T0}, s{S_T0}, s{S_T1}")
    a(f"s_lshl_b32 s{S_T1}, s{S_Q}, 5")
    a(f"s_add_u32 s{S_T0}, s{S_T0}, s{S_T1}")
    a(f"s_lshl_b32 s{S_T1}, s{S_TT}, 13")
    a(f"s_lshl_b32 s{S_T2}, s{S_Q}, 11")
    a(f"s_add_u32 s{S_T1}, s{S_T1}, s{S_T2}")
    a(f"v_add_u32 v{V_XA}, s{S_T1}, v{V_L16}")
    a("s_waitcnt lgkmcnt(0)")
    a("s_barrier")
    for qq in range(4):
        for h in range(2):
            a(f"ds_read_b128 {vr(V_OFR + 8 * qq + 4 * h, 4)}, v{V_XA} offset:{qq * 16384 + h * 1024}")
    a("s_waitcnt lgkmcnt(0)")
    for i in range(8):
        A, B = V_OFR + i, V_OFR + 16 + i
        a(f"v_add_f32 v{A}, v{A}, v{A + 8}")
        a(f"v_add_f32 v{B}, v{B}, v{B + 8}")
        a(f"v_cvt_pk_bf16_f32 v{A}, 0, v{A}")
        a(f"v_cvt_pk_bf16_f32 v{B}, 0, v{B}")
        a(f"v_mul_f32 v{A}, v{V_G}, v{A}")
        a(f"v_mul_f32 v{B}, v{V_OMG}, v{B}")
        a(f"v_cvt_pk_bf16_f32 v{A}, 0, v{A}")
        a(f"v_cvt_pk_bf16_f32 v{B}, 0, v{B}")
        a(f"v_add_f32 v{A}, v{A}, v{B}")
    for h in range(2):
        d = V_ACC + 2 * h
        b = V_OFR + 4 * h
        a(f"v_cvt_pk_bf16_f32 v{d}, v{b}, v{b + 1}")
        a(f"v_cvt_pk_bf16_f32 v{d + 1}, v{b + 2}, v{b + 3}")
        a(f"buffer_store_dwordx2 {vr(d, 2)}, v{V_T}, s[{R_OUT}:{R_OUT + 3}], s{S_T0} offen offset:{16 * h}{OSTP}")
    if STAMP:
        a("s_waitcnt vmcnt(0)")
    stamp(a, 3)
    stamp_store(a, 2, S_WAVE, R_WS, V_T)
    a.label("L_out_end")
    a("s_endpgm")
    return K, NV


def main():
    out = [x for x in sys.argv[1:] if not x.startswith("--")]
    a = Asm()
    a.raw("; @launch kernel=proj_kernel grid=(256,1,1) block=(320,1,1) lds=147456")
    a.raw("; @launch kernel=attn_kernel grid=(256,1,1) block=(1024,1,1) lds=140288")
    a.raw("; @launch kernel=out_kernel grid=(256,1,1) block=(512,1,1) lds=131072")
    a.raw('.amdgcn_target "amdgcn-amd-amdhsa--gfx950"')
    ks = [gen_proj(a), gen_attn(a), gen_out(a)]
    for k, nv in ks:
        kernel_desc(a, k, nv)
    path = out[0] if out else f"cdna_kernels/{NAME}.s"
    open(path, "w").write(a.text())
    print("wrote", path, len(a.lines), "lines")


if __name__ == "__main__":
    main()
```

```python
import sys, struct

NAME = "gated_mix__grouped_kv_mqa__mha_block__prompt"

QF_OFF = 0
KV_OFF = 4 << 20
OF_OFF = 9 << 20
G_OFF = 13 << 20
KB_OFF = 16 << 20
FL_OFF = 13 * (1 << 20) + 65536
WS_SIZE = 20 << 20
ST_OFF = 14 << 20

C_SCALE = 0.25 * 1.4426950408889634


OSTP = " sc0 sc1" if "--outwt" in sys.argv else ""


def f32bits(x):
    return struct.unpack("<I", struct.pack("<f", x))[0]


class Asm:
    def __init__(self):
        self.lines = []

    def __call__(self, s):
        for ln in s.strip("\n").split("\n"):
            self.lines.append("    " + ln.strip())

    def label(self, s):
        self.lines.append(s + ":")

    def raw(self, s):
        self.lines.append(s)

    def text(self):
        return "\n".join(self.lines) + "\n"


def vr(b, n=1):
    return f"v{b}" if n == 1 else f"v[{b}:{b + n - 1}]"


def sr(b, n=1):
    return f"s{b}" if n == 1 else f"s[{b}:{b + n - 1}]"


def srd(a, d, base, nbytes):
    a(f"s_mov_b32 s{d}, s{base}")
    a(f"s_and_b32 s{d + 1}, s{base + 1}, 0xffff")
    a(f"s_mov_b32 s{d + 2}, {nbytes}")
    a(f"s_mov_b32 s{d + 3}, 0x00020000")


STAMP = "--stamp" in sys.argv
STP = " sc0 sc1"
for _x in sys.argv:
    if _x.startswith("--stp="):
        STP = " " + _x[6:].replace("+", " ")


def stamp(a, i):
    if STAMP:
        a(f"s_memtime s[{60 + 4 * i}:{61 + 4 * i}]")
        a(f"s_memrealtime s[{62 + 4 * i}:{63 + 4 * i}]")
        a(f"s_waitcnt lgkmcnt(0)")


def stamp_store(a, region, s_wave, r_ws, vt, nw=16):
    if not STAMP:
        return
    a(f"s_mul_i32 s80, s2, {nw}")
    a(f"s_add_u32 s80, s80, s{s_wave}")
    a(f"s_lshl_b32 s80, s80, 6")
    a(f"s_add_u32 s80, s80, {ST_OFF + region * 262144}")
    a(f"v_mov_b32 v{vt + 1}, 0")
    a(f"s_mov_b64 exec, 1")
    for i in range(16):
        a(f"v_mov_b32 v{vt}, s{60 + i}")
        a(f"buffer_store_dword v{vt}, v{vt + 1}, s[{r_ws}:{r_ws + 3}], s80 offen offset:{4 * i}")
    a(f"s_mov_b64 exec, -1")


def kernel_begin(a, name):
    a.raw(".text")
    a.raw(f".globl {name}")
    a.raw(".p2align 8")
    a.raw(f".type {name},@function")
    a.label(name)


def kernel_desc(a, name, nvgpr, nsgpr=102):
    acc = (nvgpr + 3) // 4 * 4
    a.raw('.section .rodata,"a"')
    a.raw(".p2align 6")
    a.raw(f".amdhsa_kernel {name}")
    a.raw(f"  .amdhsa_next_free_vgpr {nvgpr}")
    a.raw(f"  .amdhsa_next_free_sgpr {nsgpr}")
    a.raw(f"  .amdhsa_accum_offset {acc}")
    a.raw("  .amdhsa_group_segment_fixed_size 0")
    a.raw("  .amdhsa_kernarg_size 96")
    a.raw("  .amdhsa_user_sgpr_count 2")
    a.raw("  .amdhsa_user_sgpr_kernarg_segment_ptr 1")
    a.raw("  .amdhsa_system_sgpr_workgroup_id_x 1")
    a.raw(".end_amdhsa_kernel")


def gate_row_code(a, vx, vg, vt):
    a(f"v_mov_b32 v{vt + 4}, 0")
    for i in range(4):
        x, g = vx + i, vg + i
        a(f"v_lshlrev_b32 v{vt}, 16, v{x}")
        a(f"v_and_b32 v{vt + 1}, 0xffff0000, v{x}")
        a(f"v_lshlrev_b32 v{vt + 2}, 16, v{g}")
        a(f"v_and_b32 v{vt + 3}, 0xffff0000, v{g}")
        a(f"v_mul_f32 v{vt}, v{vt}, v{vt + 2}")
        a(f"v_mul_f32 v{vt + 1}, v{vt + 1}, v{vt + 3}")
        a(f"v_cvt_pk_bf16_f32 v{vt}, v{vt}, v{vt + 1}")
        a(f"v_lshlrev_b32 v{vt + 1}, 16, v{vt}")
        a(f"v_and_b32 v{vt}, 0xffff0000, v{vt}")
        a(f"v_add_f32 v{vt + 4}, v{vt + 4}, v{vt + 1}")
        a(f"v_add_f32 v{vt + 4}, v{vt + 4}, v{vt}")
    for ctrl in ("quad_perm:[1,0,3,2]", "quad_perm:[2,3,0,1]", "row_half_mirror", "row_mirror"):
        a(f"s_nop 1")
        a(f"v_add_f32_dpp v{vt}, v{vt + 4}, v{vt + 4} {ctrl} row_mask:0xf bank_mask:0xf")
        a(f"v_mov_b32 v{vt + 4}, v{vt}")
    a(f"s_nop 1")
    a(f"v_permlane16_swap_b32 v{vt}, v{vt + 4}")
    a(f"s_nop 1")
    a(f"v_add_f32 v{vt + 4}, v{vt}, v{vt + 4}")
    a(f"v_mov_b32 v{vt}, v{vt + 4}")
    a(f"s_nop 1")
    a(f"v_permlane32_swap_b32 v{vt}, v{vt + 4}")
    a(f"s_nop 1")
    a(f"v_add_f32 v{vt}, v{vt}, v{vt + 4}")
    a(f"v_cvt_pk_bf16_f32 v{vt}, 0, v{vt}")
    a(f"v_mul_f32 v{vt}, {f32bits(-1.4426950408889634):#x}, v{vt}")
    a(f"v_exp_f32 v{vt}, v{vt}")
    a(f"s_nop 0")
    a(f"v_add_f32 v{vt}, 1.0, v{vt}")
    a(f"v_rcp_f32 v{vt}, v{vt}")
    a(f"s_nop 0")
    a(f"v_cvt_pk_bf16_f32 v{vt}, 0, v{vt}")
    a(f"v_sub_f32 v{vt + 1}, 1.0, v{vt}")
    a(f"v_cvt_pk_bf16_f32 v{vt + 1}, 0, v{vt + 1}")


class VQ:
    def __init__(self, a):
        self.a = a
        self.q = []

    def push(self, tag):
        self.q.append(tag)

    def wait(self, *tags):
        idx = max([i for i, t in enumerate(self.q) if t in tags], default=-1)
        if idx < 0:
            return
        n = len(self.q) - 1 - idx
        assert n <= 63
        self.a(f"s_waitcnt vmcnt({n})")
        del self.q[: idx + 1]


def gen_proj(a):
    K = "proj_kernel"
    kernel_begin(a, K)
    S_X, S_WQ, S_WK, S_WV, S_WQKV, S_WS = 4, 6, 8, 10, 12, 14
    R_X, R_W, R_WS, R_GW = 16, 20, 24, 28
    S_TB, S_CB, S_WAVE = 32, 33, 34
    S_XROW = 35
    S_WROW = 36
    S_PITCH = 37
    S_T0, S_T1, S_T2, S_T3 = 38, 39, 40, 41
    S_M0 = 42
    S_M0X = 43
    S_P4 = 44
    S_P64 = 45
    S_DBASE, S_HSTR, S_TSTR = 46, 47, 48
    S_GW = 50
    V_LANE, V_L16, V_WOFF, V_WA = 1, 2, 3, 4
    V_XA = 5
    V_XB = 13
    V_T = 21
    V_XF = 28
    V_PK = 44
    V_ACC = 52
    V_W = 84
    NV = 212
    SPW = 131072
    XBASE = [65536, 98304, 0, 32768]

    a(f"s_cmp_ge_u32 s2, 256")
    a(f"s_cbranch_scc1 L_proj_end")
    stamp(a, 0)
    a(f"s_load_dwordx8 s[4:11], s[0:1], 0")
    a(f"s_load_dwordx2 s[12:13], s[0:1], 48")
    a(f"s_load_dwordx2 s[14:15], s[0:1], 88")
    a(f"s_load_dwordx2 s[{S_GW}:{S_GW + 1}], s[0:1], 64")
    a(f"v_and_b32 v{V_LANE}, 63, v0")
    a(f"v_lshrrev_b32 v{V_T}, 6, v0")
    a(f"v_lshlrev_b32 v{V_L16}, 4, v{V_LANE}")
    a(f"s_and_b32 s{S_T0}, s2, 1")
    a(f"s_lshl_b32 s{S_T0}, s{S_T0}, 3")
    a(f"s_lshr_b32 s{S_T1}, s2, 3")
    a(f"s_and_b32 s{S_T2}, s{S_T1}, 7")
    a(f"s_add_u32 s{S_TB}, s{S_T0}, s{S_T2}")
    a(f"s_and_b32 s{S_T0}, s2, 6")
    a(f"s_lshl_b32 s{S_T0}, s{S_T0}, 1")
    a(f"s_lshr_b32 s{S_T1}, s{S_T1}, 3")
    a(f"s_add_u32 s{S_CB}, s{S_T0}, s{S_T1}")
    a(f"v_readfirstlane_b32 s{S_WAVE}, v{V_T}")
    a(f"v_and_b32 v{V_T}, 31, v{V_LANE}")
    a(f"v_and_b32 v{V_T + 1}, 15, v{V_LANE}")
    a(f"v_lshrrev_b32 v{V_T + 2}, 5, v{V_LANE}")
    a(f"v_xor_b32 v{V_T + 1}, v{V_T + 1}, v{V_T + 2}")
    a(f"v_lshlrev_b32 v{V_T + 1}, 4, v{V_T + 1}")
    a(f"v_lshlrev_b32 v{V_T}, 10, v{V_T}")
    a(f"v_add_u32 v{V_XA}, v{V_T}, v{V_T + 1}")
    for e in range(1, 8):
        a(f"v_xor_b32 v{V_XA + e}, {32 * e}, v{V_XA}")
    for e in range(8):
        a(f"v_add_u32 v{V_XB + e}, 0x10000, v{V_XA + e}")
    a(f"s_cmp_eq_u32 s{S_WAVE}, 4")
    a(f"s_cbranch_scc1 L_proj_special")
    a(f"s_lshl_b32 s{S_T0}, s{S_TB}, 7")
    a(f"s_lshl_b32 s{S_T1}, s{S_WAVE}, 3")
    a(f"s_add_u32 s{S_T0}, s{S_T0}, s{S_T1}")
    a(f"s_lshl_b32 s{S_XROW}, s{S_T0}, 10")
    a(f"s_lshl_b32 s{S_M0}, s{S_WAVE}, 12")
    a(f"s_lshl_b32 s{S_M0X}, s{S_WAVE}, 13")
    a(f"s_waitcnt lgkmcnt(0)")
    srd(a, R_X, S_X, 2048 * 1024)
    a(f"s_cmp_lt_u32 s{S_CB}, 4")
    a(f"s_cselect_b32 s{R_W}, s{S_WQ}, s{S_WQKV}")
    a(f"s_cselect_b32 s{S_T1}, s{S_WQ + 1}, s{S_WQKV + 1}")
    a(f"s_cselect_b32 s{S_PITCH}, 1, 3")
    a(f"s_cselect_b32 s{S_T0}, 0, 4")
    a(f"s_and_b32 s{R_W + 1}, s{S_T1}, 0xffff")
    a(f"s_lshl_b32 s{R_W + 2}, s{S_PITCH}, 19")
    a(f"s_mov_b32 s{R_W + 3}, 0x00020000")
    a(f"s_lshl_b32 s{S_PITCH}, s{S_PITCH}, 10")
    a(f"s_sub_u32 s{S_T0}, s{S_CB}, s{S_T0}")
    a(f"s_lshl_b32 s{S_T0}, s{S_T0}, 8")
    a(f"s_lshl_b32 s{S_P4}, s{S_PITCH}, 2")
    a(f"s_lshl_b32 s{S_P64}, s{S_PITCH}, 6")
    a(f"s_lshl_b32 s{S_T1}, s{S_WAVE}, 4")
    a(f"s_mul_i32 s{S_T1}, s{S_T1}, s{S_PITCH}")
    a(f"s_add_u32 s{S_WROW}, s{S_T0}, s{S_T1}")
    a(f"v_lshrrev_b32 v{V_T}, 4, v{V_LANE}")
    a(f"v_mul_lo_u32 v{V_T + 1}, v{V_T}, s{S_PITCH}")
    a(f"v_lshlrev_b32 v{V_T}, 2, v{V_T}")
    a(f"v_and_b32 v{V_T + 2}, 15, v{V_LANE}")
    a(f"v_xor_b32 v{V_T}, v{V_T}, v{V_T + 2}")
    a(f"v_lshlrev_b32 v{V_T}, 4, v{V_T}")
    a(f"v_add_u32 v{V_WOFF}, v{V_T}, v{V_T + 1}")

    def dma_w(vq, kc):
        slot = kc & 3
        a(f"s_mul_i32 s{S_T1}, s{S_P64}, {kc}")
        a(f"s_add_u32 s{S_T1}, s{S_T1}, s{S_WROW}")
        for q in range(4):
            a(f"s_add_u32 m0, s{S_M0}, {slot * 16384 + q * 1024}")
            a(f"s_nop 0")
            a(f"buffer_load_dwordx4 v{V_WOFF}, s[{R_W}:{R_W + 3}], s{S_T1} offen lds")
            vq.push(f"W{kc}")
            if q < 3:
                a(f"s_add_u32 s{S_T1}, s{S_T1}, s{S_P4}")

    def dma_x(vq, t):
        for q in range(8):
            a(f"v_xor_b32 v{V_PK + q}, {q << 4}, v{V_T + 3}")
        for q in range(8):
            a(f"s_add_u32 m0, s{S_M0X}, {XBASE[t] + q * 1024}")
            a(f"s_add_u32 s{S_T0}, s{S_XROW}, {t * 32768 + q * 1024}")
            a(f"buffer_load_dwordx4 v{V_PK + q}, s[{R_X}:{R_X + 3}], s{S_T0} offen lds")
            vq.push(f"X{t}")

    a(f"s_and_b32 s{S_T0}, s{S_WAVE}, 1")
    a(f"s_lshl_b32 s{S_T0}, s{S_T0}, 7")
    a(f"v_xor_b32 v{V_T + 3}, s{S_T0}, v{V_L16}")
    vq0 = VQ(a)
    srd(a, R_GW, S_GW, 1024)
    a(f"s_lshl_b32 s{S_T0}, s{S_TB}, 7")
    a(f"s_lshl_b32 s{S_T1}, s{S_CB}, 3")
    a(f"s_add_u32 s{S_T0}, s{S_T0}, s{S_T1}")
    a(f"s_lshl_b32 s{S_T1}, s{S_WAVE}, 1")
    a(f"s_add_u32 s{S_T3}, s{S_T0}, s{S_T1}")
    a(f"s_lshl_b32 s{S_T0}, s{S_T3}, 10")
    a(f"buffer_load_dwordx4 {vr(V_ACC, 4)}, v{V_L16}, s[{R_X}:{R_X + 3}], s{S_T0} offen")
    a(f"buffer_load_dwordx4 {vr(V_ACC + 4, 4)}, v{V_L16}, s[{R_X}:{R_X + 3}], s{S_T0} offen offset:1024")
    a(f"buffer_load_dwordx4 {vr(V_ACC + 8, 4)}, v{V_L16}, s[{R_GW}:{R_GW + 3}], 0 offen")
    for _ in range(3):
        vq0.push("G")
    dma_w(vq0, 0)
    dma_x(vq0, 0)
    for kc in range(1, 4):
        dma_w(vq0, kc)
    dma_x(vq0, 1)
    srd(a, R_WS, S_WS, WS_SIZE)
    a(f"v_lshrrev_b32 v{V_T}, 5, v{V_LANE}")
    a(f"v_lshrrev_b32 v{V_T + 1}, 2, v{V_LANE}")
    a(f"v_and_b32 v{V_T + 1}, 3, v{V_T + 1}")
    a(f"v_lshl_add_u32 v{V_T}, v{V_T}, 3, v{V_T + 1}")
    a(f"v_lshlrev_b32 v{V_T}, 8, v{V_T}")
    a(f"v_xor_b32 v{V_T + 1}, s{S_WAVE}, v{V_T + 1}")
    a(f"v_lshlrev_b32 v{V_T + 1}, 6, v{V_T + 1}")
    a(f"v_add_u32 v{V_T}, v{V_T}, v{V_T + 1}")
    a(f"v_lshrrev_b32 v{V_T + 1}, 4, v{V_LANE}")
    a(f"v_and_b32 v{V_T + 1}, 1, v{V_T + 1}")
    a(f"v_lshlrev_b32 v{V_T + 1}, 5, v{V_T + 1}")
    a(f"v_add_u32 v{V_T}, v{V_T}, v{V_T + 1}")
    a(f"v_and_b32 v{V_T + 1}, 3, v{V_LANE}")
    a(f"v_lshlrev_b32 v{V_T + 1}, 3, v{V_T + 1}")
    a(f"v_add_u32 v{V_WA}, v{V_T}, v{V_T + 1}")
    vq0.wait("G")
    gate_row_code(a, V_ACC, V_ACC + 8, V_XF)
    a(f"v_mov_b32 v{V_ACC + 12}, v{V_XF}")
    a(f"v_mov_b32 v{V_ACC + 13}, v{V_XF + 1}")
    gate_row_code(a, V_ACC + 4, V_ACC + 8, V_XF)
    a(f"v_cmp_eq_u32 vcc, 0, v{V_LANE}")
    a(f"s_lshl_b32 s{S_T0}, s{S_T3}, 2")
    a(f"s_add_u32 s{S_T0}, s{S_T0}, {G_OFF}")
    a(f"v_cndmask_b32 v{V_XF}, v{V_XF}, v{V_ACC + 12}, vcc")
    a(f"v_cndmask_b32 v{V_XF + 1}, v{V_XF + 1}, v{V_ACC + 13}, vcc")
    a(f"v_lshlrev_b32 v{V_XF + 2}, 2, v{V_LANE}")
    a(f"s_add_u32 s{S_T1}, s{S_T0}, 8192")
    a(f"s_mov_b64 exec, 3")
    a(f"buffer_store_dword v{V_XF}, v{V_XF + 2}, s[{R_WS}:{R_WS + 3}], s{S_T0} offen{STP}")
    a(f"buffer_store_dword v{V_XF + 1}, v{V_XF + 2}, s[{R_WS}:{R_WS + 3}], s{S_T1} offen{STP}")
    a(f"s_mov_b64 exec, -1")
    vq0.push("GS")
    vq0.push("GS")
    a(f"s_lshl_b32 s{S_T0}, s{S_CB}, 2")
    a(f"s_add_u32 s{S_T0}, s{S_T0}, s{S_WAVE}")
    a(f"s_cmp_ge_u32 s{S_CB}, 12")
    a(f"s_cbranch_scc1 L_proj_N")

    def xread(t, ks, buf):
        base = XBASE[t]
        xa = (V_XB if base >= 65536 else V_XA) + (ks & 7)
        a(f"ds_read_b128 {vr(V_XF + 4 * buf, 4)}, v{xa} offset:{(base & 0xffff) + (ks >> 3) * 256}")

    def wread(ks, dst, special):
        if special:
            for half in range(2):
                a(f"ds_read_b64_tr_b16 {vr(dst + 2 * half, 2)}, v{V_WA} offset:{(16 * ks + 4 * half) * 32}")
        else:
            kc, s = ks >> 2, ks & 3
            for half in range(2):
                a(f"ds_read_b64_tr_b16 {vr(dst + 2 * half, 2)}, v{V_WA} offset:{(kc & 3) * 16384 + (16 * s + 4 * half) * 256}")

    def mfma(typ, acc, wf, xf, first):
        c = "0" if first else vr(acc, 16)
        if typ == "T":
            a(f"v_mfma_f32_32x32x16_bf16 {vr(acc, 16)}, {vr(wf, 4)}, {vr(xf, 4)}, {c}")
        else:
            a(f"v_mfma_f32_32x32x16_bf16 {vr(acc, 16)}, {vr(xf, 4)}, {vr(wf, 4)}, {c}")

    def body(typ, vq, store_tile):
        for kc in range(8):
            if kc == 0:
                vq.wait("W0", "X0")
            else:
                vq.wait(f"W{kc}")
            a("s_barrier")
            if kc == 0:
                stamp(a, 1)
            if 1 <= kc <= 4:
                dma_w(vq, kc + 3)
            for s in range(4):
                ks = kc * 4 + s
                wread(ks, V_W + 4 * ks, False)
                xread(0, ks, s)
            for s in range(4):
                ks = kc * 4 + s
                a(f"s_waitcnt lgkmcnt({3 * (3 - s)})")
                mfma(typ, V_ACC, V_W + 4 * ks, V_XF + 4 * s, ks == 0)
        for t in range(1, 4):
            vq.wait(f"X{t}")
            a("s_barrier")
            if t == 1:
                dma_x(vq, 2)
                dma_x(vq, 3)
            acc = V_ACC + 16 * (t & 1)
            for ks in range(3):
                xread(t, ks, ks)
            for ks in range(32):
                if ks + 3 < 32:
                    xread(t, ks + 3, (ks + 3) & 3)
                    a("s_waitcnt lgkmcnt(3)")
                else:
                    a(f"s_waitcnt lgkmcnt({31 - ks})")
                mfma(typ, acc, V_W + 4 * ks, V_XF + 4 * (ks & 3), ks == 0)
                if ks == 6:
                    store_tile(t - 1, V_ACC + 16 * ((t - 1) & 1), vq)
        stamp(a, 2)
        a("s_nop 15")
        store_tile(3, V_ACC + 16, vq)
        if STAMP:
            a("s_waitcnt vmcnt(0)")
        stamp(a, 3)
        stamp_store(a, 1, S_WAVE, R_WS, V_T)
        a("s_endpgm")

    def pack(acc, half, d):
        for i in range(4):
            a(f"v_cvt_pk_bf16_f32 v{d + i}, v{acc + 8 * half + 2 * i}, v{acc + 8 * half + 2 * i + 1}")

    a(f"s_cmp_lt_u32 s{S_T0}, 32")
    a(f"s_cselect_b32 s{S_HSTR}, 1, 2")
    a(f"s_cselect_b32 s{S_T1}, {QF_OFF}, {(KV_OFF + 131072 - 64 * 131072) & 0xffffffff}")
    a(f"s_lshl_b32 s{S_TSTR}, s{S_HSTR}, 10")
    a(f"s_lshl_b32 s{S_HSTR}, s{S_HSTR}, 16")
    a(f"s_lshl_b32 s{S_T0}, s{S_T0}, 1")
    a(f"s_mul_i32 s{S_T0}, s{S_T0}, s{S_HSTR}")
    a(f"s_add_u32 s{S_DBASE}, s{S_T0}, s{S_T1}")
    a(f"s_lshl_b32 s{S_T0}, s{S_TB}, 2")
    a(f"s_mul_i32 s{S_T0}, s{S_T0}, s{S_TSTR}")
    a(f"s_add_u32 s{S_DBASE}, s{S_DBASE}, s{S_T0}")

    def store_T(t, acc, vq):
        pack(acc, 0, V_PK)
        pack(acc, 1, V_PK + 4)
        a(f"s_add_u32 s{S_T2}, s{S_DBASE}, s{S_HSTR}")
        a(f"buffer_store_dwordx4 {vr(V_PK, 4)}, v{V_L16}, s[{R_WS}:{R_WS + 3}], s{S_DBASE} offen{STP}")
        a(f"buffer_store_dwordx4 {vr(V_PK + 4, 4)}, v{V_L16}, s[{R_WS}:{R_WS + 3}], s{S_T2} offen{STP}")
        a(f"s_add_u32 s{S_DBASE}, s{S_DBASE}, s{S_TSTR}")
        vq.push("S")
        vq.push("S")
    import copy
    vqT = VQ(a)
    vqT.q = list(vq0.q)
    body("T", vqT, store_T)

    a.label("L_proj_N")
    a(f"s_sub_u32 s{S_T0}, s{S_T0}, 48")
    a(f"s_lshl_b32 s{S_T0}, s{S_T0}, 18")
    a(f"s_add_u32 s{S_DBASE}, s{S_T0}, {KV_OFF + 131072 + 1024}")
    a(f"s_lshl_b32 s{S_T0}, s{S_TB}, 13")
    a(f"s_add_u32 s{S_DBASE}, s{S_DBASE}, s{S_T0}")
    a(f"v_lshrrev_b32 v{V_T}, 4, v{V_LANE}")
    a(f"v_and_b32 v{V_T}, 1, v{V_T}")
    a(f"v_lshlrev_b32 v{V_T}, 17, v{V_T}")
    a(f"v_lshrrev_b32 v{V_T + 1}, 5, v{V_LANE}")
    a(f"v_lshlrev_b32 v{V_T + 1}, 9, v{V_T + 1}")
    a(f"v_add_u32 v{V_T}, v{V_T}, v{V_T + 1}")
    a(f"v_and_b32 v{V_T + 1}, 15, v{V_LANE}")
    a(f"v_lshlrev_b32 v{V_T + 1}, 4, v{V_T + 1}")
    a(f"v_add_u32 v{V_T + 4}, v{V_T}, v{V_T + 1}")

    def store_N(t, acc, vq):
        pack(acc, 0, V_PK)
        pack(acc, 1, V_PK + 4)
        a(f"buffer_store_dwordx4 {vr(V_PK, 4)}, v{V_T + 4}, s[{R_WS}:{R_WS + 3}], s{S_DBASE} offen{STP}")
        a(f"buffer_store_dwordx4 {vr(V_PK + 4, 4)}, v{V_T + 4}, s[{R_WS}:{R_WS + 3}], s{S_DBASE} offen offset:256{STP}")
        a(f"s_add_u32 s{S_DBASE}, s{S_DBASE}, 2048")
        vq.push("S")
        vq.push("S")
    vqN = VQ(a)
    vqN.q = list(vq0.q)
    body("N", vqN, store_N)

    a.label("L_proj_special")
    a(f"s_cmp_ge_u32 s{S_CB}, 8")
    a(f"s_cbranch_scc1 L_proj_end")
    a(f"s_waitcnt lgkmcnt(0)")
    srd(a, R_WS, S_WS, WS_SIZE)
    a(f"s_cmp_lt_u32 s{S_CB}, 4")
    a(f"s_cselect_b32 s{R_W}, s{S_WK}, s{S_WV}")
    a(f"s_cselect_b32 s{S_T1}, s{S_WK + 1}, s{S_WV + 1}")
    a(f"s_and_b32 s{R_W + 1}, s{S_T1}, 0xffff")
    a(f"s_mov_b32 s{R_W + 2}, 16384")
    a(f"s_mov_b32 s{R_W + 3}, 0x00020000")
    for i in range(16):
        a(f"s_mov_b32 m0, {SPW + i * 1024}")
        a(f"s_mov_b32 s{S_T0}, {i * 1024}")
        a(f"buffer_load_dwordx4 v{V_L16}, s[{R_W}:{R_W + 3}], s{S_T0} offen lds")
    a(f"v_lshrrev_b32 v{V_T}, 5, v{V_LANE}")
    a(f"v_lshrrev_b32 v{V_T + 1}, 2, v{V_LANE}")
    a(f"v_and_b32 v{V_T + 1}, 3, v{V_T + 1}")
    a(f"v_lshl_add_u32 v{V_T}, v{V_T}, 3, v{V_T + 1}")
    a(f"v_lshlrev_b32 v{V_T}, 5, v{V_T}")
    a(f"v_and_b32 v{V_T + 1}, 3, v{V_LANE}")
    a(f"v_lshlrev_b32 v{V_T + 1}, 3, v{V_T + 1}")
    a(f"v_add_u32 v{V_T}, v{V_T}, v{V_T + 1}")
    a(f"v_add_u32 v{V_WA}, {SPW}, v{V_T}")
    a(f"s_and_b32 s{S_T0}, s{S_CB}, 3")
    a(f"s_lshl_b32 s{S_T1}, s{S_TB}, 2")
    a(f"s_add_u32 s{S_T1}, s{S_T1}, s{S_T0}")
    a(f"s_lshl_b32 s{S_DBASE}, s{S_T1}, 11")
    a(f"s_add_u32 s{S_DBASE}, s{S_DBASE}, {KV_OFF}")
    a(f"v_lshrrev_b32 v{V_T + 1}, 5, v{V_LANE}")
    a(f"v_lshlrev_b32 v{V_T + 1}, 9, v{V_T + 1}")
    a(f"v_and_b32 v{V_T}, 15, v{V_LANE}")
    a(f"v_lshlrev_b32 v{V_T}, 4, v{V_T}")
    a(f"v_add_u32 v{V_T}, v{V_T}, v{V_T + 1}")
    a(f"v_and_b32 v{V_T + 1}, 16, v{V_LANE}")
    a(f"v_mov_b32 v{V_T + 2}, 0x40000000")
    a(f"v_cmp_eq_u32 vcc, 0, v{V_T + 1}")
    a(f"s_nop 1")
    a(f"v_cndmask_b32 v{V_T + 4}, v{V_T + 2}, v{V_T}, vcc")
    a("s_waitcnt vmcnt(0)")
    for kc in range(8):
        a("s_barrier")
        for ks in range(4 * kc, 4 * kc + 4):
            wread(ks, V_W + 4 * ks, True)
        a("s_waitcnt lgkmcnt(0)")
    a("s_barrier")
    extra = {0: 0, 1: 0, 2: 1, 3: 2}
    for t in range(4):
        a.label(f"L_proj_sp{t}")
        a(f"s_cmp_lg_u32 s{S_T0}, {t}")
        a(f"s_cbranch_scc1 L_proj_sp{t + 1}")
        for _ in range(extra[t]):
            a("s_barrier")
        for typ in ("T", "N"):
            if typ == "T":
                a(f"s_cmp_ge_u32 s{S_CB}, 4")
                a(f"s_cbranch_scc1 L_proj_spN{t}")
            else:
                a.label(f"L_proj_spN{t}")
            for ks in range(3):
                xread(t, ks, ks)
            for ks in range(32):
                if ks + 3 < 32:
                    xread(t, ks + 3, (ks + 3) & 3)
                    a("s_waitcnt lgkmcnt(3)")
                else:
                    a(f"s_waitcnt lgkmcnt({31 - ks})")
                mfma(typ, V_ACC, V_W + 4 * ks, V_XF + 4 * (ks & 3), ks == 0)
            a("s_nop 15")
            if typ == "T":
                pack(V_ACC, 0, V_PK)
                a(f"buffer_store_dwordx4 {vr(V_PK, 4)}, v{V_L16}, s[{R_WS}:{R_WS + 3}], s{S_DBASE} offen{STP}")
            else:
                pack(V_ACC, 0, V_PK)
                pack(V_ACC, 1, V_PK + 4)
                a(f"buffer_store_dwordx4 {vr(V_PK, 4)}, v{V_T + 4}, s[{R_WS}:{R_WS + 3}], s{S_DBASE} offen offset:1024{STP}")
                a(f"buffer_store_dwordx4 {vr(V_PK + 4, 4)}, v{V_T + 4}, s[{R_WS}:{R_WS + 3}], s{S_DBASE} offen offset:1280{STP}")
            a("s_endpgm")
    a.label("L_proj_sp4")
    a.label("L_proj_end")
    a("s_endpgm")
    return K, NV


def gen_attn(a, bias=40.0):
    K = "attn_kernel"
    kernel_begin(a, K)
    S_X, S_GW, S_WS = 4, 6, 8
    R_WS, R_X, R_GW = 12, 16, 20
    S_WAVE, S_HEAD, S_QT, S_KV = 24, 25, 26, 27
    S_T0, S_T1, S_T2 = 28, 29, 30
    S_KVH = 31
    S_MASK = 32
    S_IT = 34
    S_G, S_OMG = 35, 36
    S_SLOW = 38
    S_QOFF = 40
    S_WOA, S_WOB = 42, 44
    R_WO = 48
    V_LANE = 1
    V_L16 = 2
    V_A = 3
    V_T = 4
    V_QH, V_QL = 12, 16
    V_K = 20
    V_V = 28
    V_P = 36
    V_M = 44
    V_C = 45
    V_NM = 48
    V_S = 64
    V_O = 96
    NV = 112
    ABL = [x[6:] for x in sys.argv if x.startswith("--abl=")]

    a(f"s_cmp_ge_u32 s2, 256")
    a(f"s_cbranch_scc1 L_attn_end")
    stamp(a, 0)
    a(f"s_load_dwordx2 s[{S_WS}:{S_WS + 1}], s[0:1], 88")
    a(f"s_load_dwordx2 s[{S_X}:{S_X + 1}], s[0:1], 0")
    a(f"s_load_dwordx2 s[{S_GW}:{S_GW + 1}], s[0:1], 64")
    a(f"s_load_dwordx2 s[{S_WOA}:{S_WOA + 1}], s[0:1], 32")
    a(f"s_load_dwordx2 s[{S_WOB}:{S_WOB + 1}], s[0:1], 56")
    a(f"v_and_b32 v{V_LANE}, 63, v0")
    a(f"v_lshrrev_b32 v{V_T}, 6, v0")
    a(f"v_lshlrev_b32 v{V_L16}, 4, v{V_LANE}")
    a(f"v_readfirstlane_b32 s{S_WAVE}, v{V_T}")
    a(f"s_and_b32 s{S_T0}, s2, 7")
    a(f"s_lshr_b32 s{S_T1}, s2, 3")
    a(f"s_and_b32 s{S_T2}, s{S_T1}, 3")
    a(f"s_lshr_b32 s{S_T1}, s{S_T1}, 2")
    a(f"s_lshl_b32 s{S_T1}, s{S_T1}, 3")
    a(f"s_add_u32 s{S_HEAD}, s{S_T1}, s{S_T0}")
    a(f"s_lshl_b32 s{S_QT}, s{S_T2}, 4")
    a(f"s_add_u32 s{S_QT}, s{S_QT}, s{S_WAVE}")
    a(f"s_sub_u32 s{S_T0}, s{S_HEAD}, 31")
    a(f"s_cmp_lt_u32 s{S_HEAD}, 32")
    a(f"s_cselect_b32 s{S_KVH}, 0, s{S_T0}")
    a(f"s_lshl_b32 s{S_KV}, s{S_KVH}, 17")
    a(f"s_add_u32 s{S_KV}, s{S_KV}, {KV_OFF}")
    a(f"s_mov_b32 s{S_MASK}, 0x0000ffff")
    a(f"s_mov_b32 s{S_MASK + 1}, 0x0000ffff")
    a(f"s_lshl_b32 s{S_T0}, s{S_HEAD}, 16")
    a(f"s_lshl_b32 s{S_T1}, s{S_QT}, 10")
    a(f"s_add_u32 s{S_QOFF}, s{S_T0}, s{S_T1}")
    a(f"s_lshl_b32 s{S_T0}, s{S_WAVE}, 10")
    a(f"s_add_u32 s{S_T1}, s{S_T0}, s{S_KV}")
    a(f"s_waitcnt lgkmcnt(0)")
    srd(a, R_WS, S_WS, WS_SIZE)
    a(f"s_xor_b32 s{S_T2}, s{S_T0}, 1024")
    a(f"s_add_u32 s{S_IT}, s{S_T2}, s{S_KV}")
    a(f"s_mov_b32 m0, s{S_T0}")
    a(f"s_nop 0")
    a(f"buffer_load_dwordx4 v{V_L16}, s[{R_WS}:{R_WS + 3}], s{S_T1} offen lds")
    a(f"buffer_load_dwordx4 {vr(V_S, 4)}, v{V_L16}, s[{R_WS}:{R_WS + 3}], s{S_QOFF} offen")
    for i in range(1, 8):
        lds_s, glb_s = (S_T0, S_T1) if i % 2 == 0 else (S_T2, S_IT)
        a(f"s_add_u32 m0, s{lds_s}, {i * 16384}")
        a(f"s_add_u32 s{S_G}, s{glb_s}, {i * 16384}")
        a(f"buffer_load_dwordx4 v{V_L16}, s[{R_WS}:{R_WS + 3}], s{S_G} offen lds")
    a(f"s_and_b32 s{S_OMG}, s{S_WAVE}, 14")
    a(f"s_lshl_b32 s{S_OMG}, s{S_OMG}, 10")
    a(f"v_add_u32 v{V_M}, s{S_OMG}, v{V_L16}")
    a(f"s_and_b32 s{S_OMG}, s{S_WAVE}, 1")
    a(f"v_and_b32 v{V_T}, 27, v{V_LANE}")
    a(f"v_cmp_eq_u32 vcc, 16, v{V_T}")
    a(f"v_mov_b32 v{V_T + 1}, 0x3f803f80")
    a(f"s_nop 1")
    for i in range(8):
        a(f"v_cndmask_b32 v{V_V + i}, 0, v{V_T + 1}, vcc")
    for i in range(16):
        a(f"v_mov_b32 v{V_O + i}, 0")
    a(f"v_mov_b32 v{V_C}, {f32bits(C_SCALE):#x}")
    a(f"v_mov_b32 v{V_A}, v{V_L16}")
    def kconv(off, tmp):
        a(f"ds_read_b128 {vr(tmp, 4)}, v{V_M} offset:{off}")
        a(f"s_waitcnt lgkmcnt(0)")
        for i in range(4):
            a(f"v_lshlrev_b32 v{V_T}, 16, v{tmp + i}")
            a(f"v_and_b32 v{V_T + 1}, 0xffff0000, v{tmp + i}")
            a(f"v_max3_f32 v{V_QL}, abs(v{V_T}), abs(v{V_T + 1}), v{V_QL}")
            a(f"v_cvt_pkrtz_f16_f32 v{tmp + i}, v{V_T}, v{V_T + 1}")
        a(f"ds_write_b128 v{V_M}, {vr(tmp, 4)} offset:{off}")

    a(f"v_mov_b32 v{V_QL}, 0")
    a(f"s_waitcnt vmcnt(7)")
    a(f"s_cmp_lg_u32 s{S_OMG}, 0")
    a(f"s_cbranch_scc1 L_attn_nc0")
    kconv(0, V_S + 4)
    a.label("L_attn_nc0")
    a(f"v_mov_b32 v{V_T + 4}, 0")
    for i in range(4):
        q = V_S + i
        a(f"v_lshlrev_b32 v{V_T}, 16, v{q}")
        a(f"v_and_b32 v{V_T + 1}, 0xffff0000, v{q}")
        a(f"v_mul_f32 v{V_T}, v{V_C}, v{V_T}")
        a(f"v_mul_f32 v{V_T + 1}, v{V_C}, v{V_T + 1}")
        a(f"v_max3_f32 v{V_T + 4}, abs(v{V_T}), abs(v{V_T + 1}), v{V_T + 4}")
        a(f"v_cvt_f16_f32 v{V_T}, v{V_T}")
        a(f"v_cvt_f16_f32 v{V_T + 1}, v{V_T + 1}")
        a(f"v_pack_b32_f16 v{V_QH + i}, v{V_T}, v{V_T + 1}")
    a(f"v_mov_b32 v{V_T}, 0x477fe000")
    a(f"v_cmp_nle_f32 vcc, v{V_T + 4}, v{V_T}")
    a(f"s_mov_b64 s[{S_SLOW}:{S_SLOW + 1}], vcc")
    a(f"s_waitcnt lgkmcnt(0)")
    a(f"s_barrier")
    stamp(a, 1)

    def mf(d, A, B, c, ty="bf16"):
        a(f"v_mfma_f32_32x32x16_{ty} {vr(d, 16)}, {vr(A, 4)}, {vr(B, 4)}, {c}")

    def vread(dst, off):
        a(f"s_mov_b64 exec, s[{S_MASK}:{S_MASK + 1}]")
        a(f"ds_read_b128 {vr(dst, 4)}, v{V_A} offset:{off}")
        a(f"s_mov_b64 exec, -1")

    def tile_max(S, dst, tmp):
        a(f"v_max3_f32 v{dst}, v{S}, v{S + 1}, v{S + 2}")
        for i in range(3, 15, 2):
            a(f"v_max3_f32 v{dst}, v{dst}, v{S + i}, v{S + i + 1}")
        a(f"v_max_f32 v{dst}, v{dst}, v{S + 15}")
        a(f"v_mov_b32 v{tmp}, v{dst}")
        a(f"s_nop 1")
        a(f"v_permlane32_swap_b32 v{dst}, v{tmp}")
        a(f"s_nop 1")
        a(f"v_max_f32 v{dst}, v{dst}, v{tmp}")

    a(f"ds_read_b128 {vr(V_K, 4)}, v{V_A} offset:0")
    a(f"ds_read_b128 {vr(V_K + 4, 4)}, v{V_A} offset:2048")
    vread(V_V, 1024)
    a(f"s_waitcnt lgkmcnt(2)")
    mf(V_NM, V_K, V_QH, "0", "f16")
    a("s_nop 15")
    a("s_nop 3")
    S0 = V_S
    tile_max(V_NM, V_T, V_T + 1)
    a(f"v_sub_f32 v{V_T}, {f32bits(-bias):#x}, v{V_T}")
    for i in range(16):
        a(f"v_add_f32 v{S0 + i}, v{V_NM + i}, v{V_T}")
    for i in range(16):
        a(f"v_mov_b32 v{V_NM + i}, v{V_T}")
    for i in range(4, 8):
        a(f"v_mov_b32 v{V_P + i}, 0")
    a(f"s_mov_b32 s{S_IT}, 0")

    def ex(A, i):
        if "exp" not in ABL:
            a(f"v_exp_f32 v{A + i}, v{A + i}")

    def cv(A, i):
        if "cvt" not in ABL:
            a(f"v_cvt_pk_bf16_f32 v{V_P + i}, v{A + 2 * i}, v{A + 2 * i + 1}")

    def sub_iter(par):
        A = V_S + 16 * par
        B = V_S + 16 * (par ^ 1)
        Kn = V_K + 4 * (par ^ 1)
        Kp = V_K + 4 * par
        base = 2048 * par
        a(f"s_waitcnt lgkmcnt(1)")
        mf(B, Kn, V_QH, vr(V_NM, 16), "f16")
        a(f"ds_read_b128 {vr(Kp, 4)}, v{V_A} offset:{base + 4096}")
        for i in range(0, 5):
            ex(A, i)
        mf(V_O, V_V + 4, V_P + 4, vr(V_O, 16))
        vread(V_V + 4, base + 1024 + 256)
        for i in range(5, 8):
            ex(A, i)
        for i in range(0, 4):
            cv(A, i)
        for i in range(8, 10):
            ex(A, i)
        a(f"s_waitcnt lgkmcnt(2)")
        mf(V_O, V_V, V_P, vr(V_O, 16))
        vread(V_V, base + 2048 + 1024)
        for i in range(10, 16):
            ex(A, i)
        for i in range(4, 8):
            cv(A, i)

    ladder = [(0, 3), (40, 2), (56, 1), (60, 0)]
    for x in sys.argv:
        if x.startswith("--ladder="):
            bs = [int(v) for v in x.split("=")[1].split(",")]
            ladder = [(0, 3)] + [(b, 2 - i) for i, b in enumerate(bs)]
    a("s_setprio 3")
    a.label("L_attn_loop")
    for u in range(4):
        for (t0, pr) in ladder:
            if t0 > 0 and (t0 % 8) // 2 == u:
                a(f"s_cmp_eq_u32 s{S_IT}, {t0 // 8}")
                a(f"s_cbranch_scc0 L_attn_np{t0}")
                a(f"s_setprio {pr}")
                a.label(f"L_attn_np{t0}")
        if u == 2:
            a(f"s_cmp_eq_u32 s{S_IT}, 0")
            a(f"s_cbranch_scc0 L_attn_nobar")
            a(f"s_waitcnt vmcnt(0) lgkmcnt(0)")
            a(f"s_cmp_lg_u32 s{S_OMG}, 0")
            a(f"s_cbranch_scc1 L_attn_c_odd")
            for i in (2, 4, 6):
                kconv(i * 16384 if i * 16384 < 65536 else 0, V_T + 4) if False else None
            a(f"v_add_u32 v{V_M}, 0x8000, v{V_M}")
            for i in range(3):
                kconv(0, V_T + 4)
                a(f"v_add_u32 v{V_M}, 0x8000, v{V_M}")
            a(f"s_branch L_attn_c_done")
            a.label("L_attn_c_odd")
            a(f"v_add_u32 v{V_M}, 0x4000, v{V_M}")
            for i in range(4):
                kconv(0, V_T + 4)
                a(f"v_add_u32 v{V_M}, 0x8000, v{V_M}")
            a.label("L_attn_c_done")
            a(f"v_mov_b32 v{V_T}, 0x477fe000")
            a(f"v_cmp_nle_f32 vcc, v{V_QL}, v{V_T}")
            a(f"s_cmp_lg_u64 vcc, 0")
            a(f"s_cselect_b32 s{S_T0}, 1, 0")
            a(f"s_lshl_b32 s{S_T1}, s{S_WAVE}, 2")
            a(f"s_add_u32 s{S_T1}, s{S_T1}, {131072 + 8192}")
            a(f"v_mov_b32 v{V_T}, s{S_T0}")
            a(f"v_mov_b32 v{V_T + 1}, s{S_T1}")
            a(f"ds_write_b32 v{V_T + 1}, v{V_T}")
            a(f"s_waitcnt lgkmcnt(0)")
            a(f"s_barrier")
            if "--nopf" not in sys.argv:
                a(f"s_lshr_b32 s{S_T0}, s2, 3")
                a(f"s_lshl_b32 s{S_T0}, s{S_T0}, 4")
                a(f"s_add_u32 s{S_T0}, s{S_T0}, s{S_WAVE}")
                a(f"s_cmp_lt_u32 s{S_T0}, 256")
                a(f"s_cselect_b32 s{R_WO}, s{S_WOA}, s{S_WOB}")
                a(f"s_cselect_b32 s{S_T1}, s{S_WOA + 1}, s{S_WOB + 1}")
                a(f"s_and_b32 s{R_WO + 1}, s{S_T1}, 0xffff")
                a(f"s_mov_b32 s{R_WO + 2}, {512 * 1024}")
                a(f"s_mov_b32 s{R_WO + 3}, 0x00020000")
                a(f"s_and_b32 s{S_T0}, s{S_T0}, 255")
                a(f"s_lshl_b32 s{S_T0}, s{S_T0}, 11")
                a(f"buffer_load_dwordx4 {vr(V_QL, 4)}, v{V_L16}, s[{R_WO}:{R_WO + 3}], s{S_T0} offen")
                a(f"buffer_load_dwordx4 {vr(V_QL, 4)}, v{V_L16}, s[{R_WO}:{R_WO + 3}], s{S_T0} offen offset:1024")
            a.label("L_attn_nobar")
        sub_iter(0)
        sub_iter(1)
        a(f"v_add_u32 v{V_A}, 0x1000, v{V_A}")
    a(f"s_add_u32 s{S_IT}, s{S_IT}, 1")
    a(f"s_cmp_lt_u32 s{S_IT}, 8")
    a(f"s_cbranch_scc1 L_attn_loop")
    a(f"s_waitcnt lgkmcnt(0)")
    stamp(a, 2)
    mf(V_O, V_V + 4, V_P + 4, vr(V_O, 16))
    a("s_nop 15")
    a("s_nop 3")
    a(f"v_and_b32 v{V_T}, 15, v{V_LANE}")
    a(f"v_lshlrev_b32 v{V_T}, 2, v{V_T}")
    a(f"v_add_u32 v{V_T}, {131072 + 8192}, v{V_T}")
    a(f"ds_read_b32 v{V_T + 1}, v{V_T}")
    a(f"s_waitcnt lgkmcnt(0)")
    a(f"v_cmp_ne_u32 vcc, 0, v{V_T + 1}")
    a(f"s_or_b64 s[{S_SLOW}:{S_SLOW + 1}], s[{S_SLOW}:{S_SLOW + 1}], vcc")
    a(f"v_mov_b32 v{V_T}, {f32bits(2.0 ** 120):#x}")
    a(f"v_cmp_nlt_f32 vcc, v{V_O + 8}, v{V_T}")
    a(f"s_or_b64 s[{S_SLOW}:{S_SLOW + 1}], s[{S_SLOW}:{S_SLOW + 1}], vcc")
    for i in range(8):
        a(f"v_cmp_nlt_f32 vcc, abs(v{V_O + i}), v{V_T}")
        a(f"s_or_b64 s[{S_SLOW}:{S_SLOW + 1}], s[{S_SLOW}:{S_SLOW + 1}], vcc")
    if "--forceslow" in sys.argv:
        a(f"s_branch L_attn_slow")
    a(f"s_cmp_eq_u64 s[{S_SLOW}:{S_SLOW + 1}], 0")
    a(f"s_cbranch_scc0 L_attn_slow")
    a.label("L_attn_epi")
    a(f"v_rcp_f32 v{V_T}, v{V_O + 8}")
    a("s_nop 0")
    for i in range(8):
        a(f"v_mul_f32 v{V_O + i}, v{V_O + i}, v{V_T}")
    for i in range(4):
        a(f"v_cvt_pk_bf16_f32 v{V_P + i}, v{V_O + 2 * i}, v{V_O + 2 * i + 1}")
    a(f"s_add_u32 s{S_T0}, s{S_QOFF}, {OF_OFF}")
    a(f"buffer_store_dwordx4 {vr(V_P, 4)}, v{V_L16}, s[{R_WS}:{R_WS + 3}], s{S_T0} offen{STP}")
    stamp(a, 3)
    stamp_store(a, 0, S_WAVE, R_WS, V_T)
    a.label("L_attn_end")
    a("s_endpgm")

    a.label("L_attn_slow")
    a("s_setprio 0")
    a(f"buffer_load_dwordx4 {vr(V_S, 4)}, v{V_L16}, s[{R_WS}:{R_WS + 3}], s{S_QOFF} offen")
    a(f"v_mov_b32 v{V_A}, v{V_L16}")
    for i in range(16):
        a(f"v_mov_b32 v{V_O + i}, 0")
    a(f"v_mov_b32 v{V_M}, 0xff7fffff")
    a(f"s_mov_b32 s{S_IT}, 0")
    a(f"s_mov_b32 s{S_T2}, s{S_KV}")
    a(f"s_waitcnt vmcnt(0)")
    for i in range(4):
        q = V_S + i
        a(f"v_lshlrev_b32 v{V_T}, 16, v{q}")
        a(f"v_and_b32 v{V_T + 1}, 0xffff0000, v{q}")
        a(f"v_mul_f32 v{V_T}, v{V_C}, v{V_T}")
        a(f"v_mul_f32 v{V_T + 1}, v{V_C}, v{V_T + 1}")
        a(f"v_cvt_pk_bf16_f32 v{V_QH + i}, v{V_T}, v{V_T + 1}")
        a(f"v_lshlrev_b32 v{V_T + 2}, 16, v{V_QH + i}")
        a(f"v_and_b32 v{V_T + 3}, 0xffff0000, v{V_QH + i}")
        a(f"v_sub_f32 v{V_T}, v{V_T}, v{V_T + 2}")
        a(f"v_sub_f32 v{V_T + 1}, v{V_T + 1}, v{V_T + 3}")
        a(f"v_cvt_pk_bf16_f32 v{V_QL + i}, v{V_T}, v{V_T + 1}")
    a.label("L_attn_slow_loop")
    a(f"buffer_load_dwordx4 {vr(V_K, 4)}, v{V_L16}, s[{R_WS}:{R_WS + 3}], s{S_T2} offen")
    vread(V_V, 1024)
    vread(V_V + 4, 1024 + 256)
    a(f"s_waitcnt vmcnt(0) lgkmcnt(0)")
    mf(S0, V_K, V_QH, "0")
    mf(S0, V_K, V_QL, vr(S0, 16))
    a("s_nop 15")
    a("s_nop 3")
    tile_max(S0, V_T, V_T + 1)
    a(f"v_max_f32 v{V_T}, v{V_T}, v{V_M}")
    a(f"v_sub_f32 v{V_T + 1}, v{V_M}, v{V_T}")
    a(f"v_exp_f32 v{V_T + 1}, v{V_T + 1}")
    a(f"v_mov_b32 v{V_M}, v{V_T}")
    for i in range(16):
        a(f"v_mul_f32 v{V_O + i}, v{V_O + i}, v{V_T + 1}")
    for i in range(16):
        a(f"v_sub_f32 v{S0 + i}, v{S0 + i}, v{V_M}")
        a(f"v_exp_f32 v{S0 + i}, v{S0 + i}")
    a("s_nop 0")
    for i in range(8):
        a(f"v_cvt_pk_bf16_f32 v{V_P + i}, v{S0 + 2 * i}, v{S0 + 2 * i + 1}")
    a("s_nop 1")
    mf(V_O, V_V, V_P, vr(V_O, 16))
    mf(V_O, V_V + 4, V_P + 4, vr(V_O, 16))
    a("s_nop 15")
    a("s_nop 3")
    a(f"v_add_u32 v{V_A}, 0x800, v{V_A}")
    a(f"s_add_u32 s{S_T2}, s{S_T2}, 2048")
    a(f"s_add_u32 s{S_IT}, s{S_IT}, 1")
    a(f"s_cmp_lt_u32 s{S_IT}, 64")
    a(f"s_cbranch_scc1 L_attn_slow_loop")
    a(f"s_branch L_attn_epi")
    return K, NV


def gen_out(a):
    K = "out_kernel"
    kernel_begin(a, K)
    S_WOA, S_WOB, S_OUT, S_WS = 4, 6, 8, 10
    R_WA, R_OUT, R_WS = 12, 20, 24
    S_TB, S_CB, S_WAVE, S_TT, S_KH, S_BR = 28, 29, 30, 31, 32, 33
    S_T0, S_T1, S_T2 = 34, 35, 36
    S_OB = 37
    S_WB = 38
    S_M0 = 39
    S_Q = 40
    V_LANE, V_L16, V_WOFF, V_WA = 1, 2, 3, 4
    V_T = 5
    V_G, V_OMG = 12, 13
    V_XA = 14
    V_WA1 = 15
    V_WF = 16
    V_ACC = 32
    V_OFR = 64
    NV = 128

    a(f"s_cmp_ge_u32 s2, 256")
    a(f"s_cbranch_scc1 L_out_end")
    stamp(a, 0)
    a(f"s_load_dwordx2 s[{S_WS}:{S_WS + 1}], s[0:1], 88")
    a(f"s_load_dwordx2 s[{S_WOA}:{S_WOA + 1}], s[0:1], 32")
    a(f"s_load_dwordx2 s[{S_WOB}:{S_WOB + 1}], s[0:1], 56")
    a(f"s_load_dwordx2 s[{S_OUT}:{S_OUT + 1}], s[0:1], 72")
    a(f"v_and_b32 v{V_LANE}, 63, v0")
    a(f"v_lshrrev_b32 v{V_T}, 6, v0")
    a(f"v_lshlrev_b32 v{V_L16}, 4, v{V_LANE}")
    a(f"v_readfirstlane_b32 s{S_WAVE}, v{V_T}")
    a(f"s_and_b32 s{S_T0}, s2, 7")
    a(f"s_lshl_b32 s{S_T0}, s{S_T0}, 2")
    a(f"s_lshr_b32 s{S_T1}, s2, 3")
    a(f"s_and_b32 s{S_T1}, s{S_T1}, 3")
    a(f"s_add_u32 s{S_TB}, s{S_T0}, s{S_T1}")
    a(f"s_lshr_b32 s{S_CB}, s2, 5")
    a(f"s_and_b32 s{S_TT}, s{S_WAVE}, 1")
    a(f"s_lshr_b32 s{S_Q}, s{S_WAVE}, 1")
    a(f"s_and_b32 s{S_KH}, s{S_Q}, 1")
    a(f"s_lshr_b32 s{S_BR}, s{S_WAVE}, 2")
    a(f"v_lshrrev_b32 v{V_T}, 3, v{V_LANE}")
    a(f"v_lshlrev_b32 v{V_T + 1}, 10, v{V_T}")
    a(f"v_lshrrev_b32 v{V_T}, 1, v{V_T}")
    a(f"v_and_b32 v{V_T}, 1, v{V_T}")
    a(f"v_lshlrev_b32 v{V_T}, 2, v{V_T}")
    a(f"v_and_b32 v{V_T + 2}, 7, v{V_LANE}")
    a(f"v_xor_b32 v{V_T}, v{V_T}, v{V_T + 2}")
    a(f"v_lshlrev_b32 v{V_T}, 4, v{V_T}")
    a(f"v_add_u32 v{V_WOFF}, v{V_T}, v{V_T + 1}")
    a(f"s_lshl_b32 s{S_T0}, s{S_TB}, 1")
    a(f"s_add_u32 s{S_T0}, s{S_T0}, s{S_TT}")
    a(f"s_lshl_b32 s{S_OB}, s{S_T0}, 10")
    a(f"s_lshl_b32 s{S_T1}, s{S_Q}, 20")
    a(f"s_add_u32 s{S_OB}, s{S_OB}, s{S_T1}")
    a(f"s_add_u32 s{S_OB}, s{S_OB}, {OF_OFF}")
    a(f"s_lshl_b32 s{S_WB}, s{S_CB}, 7")
    a(f"s_lshl_b32 s{S_T0}, s{S_KH}, 18")
    a(f"s_add_u32 s{S_WB}, s{S_WB}, s{S_T0}")
    a(f"s_lshl_b32 s{S_T0}, s{S_TT}, 15")
    a(f"s_add_u32 s{S_WB}, s{S_WB}, s{S_T0}")
    a(f"s_lshl_b32 s{S_M0}, s{S_Q}, 15")
    a(f"s_lshl_b32 s{S_T0}, s{S_TT}, 12")
    a(f"s_add_u32 s{S_M0}, s{S_M0}, s{S_T0}")
    a(f"s_waitcnt lgkmcnt(0)")
    srd(a, R_WS, S_WS, WS_SIZE)
    a(f"s_cmp_eq_u32 s{S_BR}, 0")
    a(f"s_cselect_b32 s{R_WA}, s{S_WOA}, s{S_WOB}")
    a(f"s_cselect_b32 s{S_T0}, s{S_WOA + 1}, s{S_WOB + 1}")
    a(f"s_and_b32 s{R_WA + 1}, s{S_T0}, 0xffff")
    a(f"s_mov_b32 s{R_WA + 2}, {512 * 1024}")
    a(f"s_mov_b32 s{R_WA + 3}, 0x00020000")

    queue = []

    def dma_w(st):
        for q in range(4):
            a(f"s_add_u32 m0, s{S_M0}, {st * 8192 + q * 1024}")
            a(f"s_add_u32 s{S_T0}, s{S_WB}, {st * 65536 + q * 8192}")
            a(f"buffer_load_dwordx4 v{V_WOFF}, s[{R_WA}:{R_WA + 3}], s{S_T0} offen lds")
            queue.append(("W", st))

    def load_o(st):
        for s in range(4):
            hd = st * 4 + s
            a(f"s_add_u32 s{S_T0}, s{S_OB}, {hd * 65536}")
            a(f"buffer_load_dwordx4 {vr(V_OFR + 4 * hd, 4)}, v{V_L16}, s[{R_WS}:{R_WS + 3}], s{S_T0} offen")
            queue.append(("O", st))

    def wait_for(st):
        idx = max(i for i, (k, s) in enumerate(queue) if s == st and k in ("W", "O"))
        n = len(queue) - 1 - idx
        a(f"s_waitcnt vmcnt({n})")
        del queue[: idx + 1]

    for st in range(4):
        load_o(st)
        dma_w(st)
    a(f"v_lshrrev_b32 v{V_T}, 3, v{V_LANE}")
    a(f"s_lshl_b32 s{S_T0}, s{S_Q}, 3")
    a(f"v_add_u32 v{V_T}, s{S_T0}, v{V_T}")
    a(f"v_lshlrev_b32 v{V_T}, 2, v{V_T}")
    a(f"s_lshl_b32 s{S_T0}, s{S_TB}, 1")
    a(f"s_add_u32 s{S_T0}, s{S_T0}, s{S_TT}")
    a(f"s_lshl_b32 s{S_T0}, s{S_T0}, 7")
    a(f"s_add_u32 s{S_T0}, s{S_T0}, {G_OFF}")
    a(f"buffer_load_dword v{V_G}, v{V_T}, s[{R_WS}:{R_WS + 3}], s{S_T0} offen")
    a(f"s_add_u32 s{S_T0}, s{S_T0}, 8192")
    a(f"buffer_load_dword v{V_OMG}, v{V_T}, s[{R_WS}:{R_WS + 3}], s{S_T0} offen")
    queue.append(("G", -1))
    queue.append(("G", -1))
    srd(a, R_OUT, S_OUT, 2048 * 1024)
    a(f"v_lshrrev_b32 v{V_T}, 5, v{V_LANE}")
    a(f"v_lshrrev_b32 v{V_T + 1}, 2, v{V_LANE}")
    a(f"v_and_b32 v{V_T + 1}, 3, v{V_T + 1}")
    a(f"v_lshl_add_u32 v{V_T}, v{V_T}, 2, v{V_T + 1}")
    a(f"v_lshlrev_b32 v{V_T}, 7, v{V_T}")
    a(f"v_lshrrev_b32 v{V_T + 1}, 1, v{V_T + 1}")
    a(f"v_lshlrev_b32 v{V_T + 1}, 6, v{V_T + 1}")
    a(f"v_add_u32 v{V_T}, v{V_T}, v{V_T + 1}")
    a(f"v_lshrrev_b32 v{V_T + 1}, 4, v{V_LANE}")
    a(f"v_and_b32 v{V_T + 1}, 1, v{V_T + 1}")
    a(f"v_lshlrev_b32 v{V_T + 1}, 5, v{V_T + 1}")
    a(f"v_add_u32 v{V_T}, v{V_T}, v{V_T + 1}")
    a(f"v_and_b32 v{V_T + 1}, 3, v{V_LANE}")
    a(f"v_lshlrev_b32 v{V_T + 1}, 3, v{V_T + 1}")
    a(f"v_add_u32 v{V_T}, v{V_T}, v{V_T + 1}")
    a(f"s_lshl_b32 s{S_T0}, s{S_Q}, 15")
    a(f"v_add_u32 v{V_WA}, s{S_T0}, v{V_T}")
    a(f"v_xor_b32 v{V_WA1}, 64, v{V_WA}")
    a(f"s_lshl_b32 s{S_T0}, s{S_WAVE}, 13")
    a(f"v_add_u32 v{V_XA}, s{S_T0}, v{V_L16}")
    for i in range(32):
        a(f"v_mov_b32 v{V_ACC + i}, 0")
    nstep = 0
    for st in range(4):
        wait_for(st)
        a("s_barrier")
        if st == 0:
            stamp(a, 1)

        def rd(s, wb):
            off = st * 8192 + s * 2048
            for ct in range(2):
                wa = V_WA if ct == 0 else V_WA1
                a(f"ds_read_b64_tr_b16 {vr(V_WF + 8 * wb + 4 * ct, 2)}, v{wa} offset:{off}")
                a(f"ds_read_b64_tr_b16 {vr(V_WF + 8 * wb + 4 * ct + 2, 2)}, v{wa} offset:{off + 1024}")
        rd(0, 0)
        for s in range(4):
            if s < 3:
                rd(s + 1, (s + 1) & 1)
                a("s_waitcnt lgkmcnt(4)")
            else:
                a("s_waitcnt lgkmcnt(0)")
            for ct in range(2):
                acc = vr(V_ACC + 16 * ct, 16)
                a(f"v_mfma_f32_32x32x16_bf16 {acc}, {vr(V_WF + 8 * (s & 1) + 4 * ct, 4)}, {vr(V_OFR + 4 * (st * 4 + s), 4)}, {acc}")
    stamp(a, 2)
    a("s_waitcnt vmcnt(0)")
    a("s_barrier")
    a("s_nop 15")
    for g in range(8):
        a(f"v_xor_b32 v{V_T}, {32 * g}, v{V_XA}")
        a(f"ds_write_b128 v{V_T}, {vr(V_ACC + 4 * g, 4)} offset:{g * 1024}")
    a(f"v_lshrrev_b32 v{V_T}, 3, v{V_LANE}")
    a(f"s_lshl_b32 s{S_T1}, s{S_Q}, 3")
    a(f"v_add_u32 v{V_T}, s{S_T1}, v{V_T}")
    a(f"v_and_b32 v{V_T + 1}, 7, v{V_LANE}")
    a(f"v_lshlrev_b32 v{V_T + 2}, 1, v{V_T + 1}")
    a(f"v_xor_b32 v{V_T + 2}, v{V_T + 2}, v{V_T}")
    a(f"v_lshlrev_b32 v{V_T + 2}, 4, v{V_T + 2}")
    a(f"v_lshl_add_u32 v{V_T + 2}, v{V_T + 1}, 10, v{V_T + 2}")
    a(f"s_lshl_b32 s{S_T1}, s{S_TT}, 13")
    a(f"v_add_u32 v{V_XA}, s{S_T1}, v{V_T + 2}")
    a(f"v_lshlrev_b32 v{V_T + 3}, 10, v{V_T}")
    a(f"v_lshl_add_u32 v{V_T + 3}, v{V_T + 1}, 4, v{V_T + 3}")
    a(f"s_lshl_b32 s{S_T0}, s{S_TB}, 1")
    a(f"s_add_u32 s{S_T0}, s{S_T0}, s{S_TT}")
    a(f"s_lshl_b32 s{S_T0}, s{S_T0}, 15")
    a(f"s_lshl_b32 s{S_T1}, s{S_CB}, 7")
    a(f"s_add_u32 s{S_T0}, s{S_T0}, s{S_T1}")
    a("s_waitcnt lgkmcnt(0)")
    a("s_barrier")
    for qq in range(4):
        for h in range(2):
            a(f"ds_read_b128 {vr(V_OFR + 8 * qq + 4 * h, 4)}, v{V_XA} offset:{qq * 16384 + h * 512}")
    a("s_waitcnt lgkmcnt(0)")
    for i in range(8):
        A, B = V_OFR + i, V_OFR + 16 + i
        a(f"v_add_f32 v{A}, v{A}, v{A + 8}")
        a(f"v_add_f32 v{B}, v{B}, v{B + 8}")
        a(f"v_cvt_pk_bf16_f32 v{A}, 0, v{A}")
        a(f"v_cvt_pk_bf16_f32 v{B}, 0, v{B}")
        a(f"v_mul_f32 v{A}, v{V_G}, v{A}")
        a(f"v_mul_f32 v{B}, v{V_OMG}, v{B}")
        a(f"v_cvt_pk_bf16_f32 v{A}, 0, v{A}")
        a(f"v_cvt_pk_bf16_f32 v{B}, 0, v{B}")
        a(f"v_add_f32 v{A}, v{A}, v{B}")
    for i in range(4):
        a(f"v_cvt_pk_bf16_f32 v{V_ACC + i}, v{V_OFR + 2 * i}, v{V_OFR + 2 * i + 1}")
    a(f"buffer_store_dwordx4 {vr(V_ACC, 4)}, v{V_T + 3}, s[{R_OUT}:{R_OUT + 3}], s{S_T0} offen{OSTP}")
    if STAMP:
        a("s_waitcnt vmcnt(0)")
    stamp(a, 3)
    stamp_store(a, 2, S_WAVE, R_WS, V_T)
    a.label("L_out_end")
    a("s_endpgm")
    return K, NV


def main():
    out = [x for x in sys.argv[1:] if not x.startswith("--")]
    a = Asm()
    a.raw("; @launch kernel=proj_kernel grid=(256,1,1) block=(320,1,1) lds=147456")
    a.raw("; @launch kernel=attn_kernel grid=(256,1,1) block=(1024,1,1) lds=140288")
    a.raw("; @launch kernel=out_kernel grid=(256,1,1) block=(512,1,1) lds=131072")
    a.raw('.amdgcn_target "amdgcn-amd-amdhsa--gfx950"')
    ks = [gen_proj(a), gen_attn(a), gen_out(a)]
    for k, nv in ks:
        kernel_desc(a, k, nv)
    path = out[0] if out else f"cdna_kernels/{NAME}.s"
    open(path, "w").write(a.text())
    print("wrote", path, len(a.lines), "lines")


if __name__ == "__main__":
    main()
```
